```python
import torch

def _softmax(x, axis=-1):
    return torch.softmax(x, dim=axis)

def _gelu(x):
    return torch.nn.functional.gelu(x, approximate='tanh')

def _silu(x):
    return torch.nn.functional.silu(x)

def _sigmoid(x):
    return torch.sigmoid(x)

def _layernorm(x, axis=-1, eps=1e-05):
    m = x.mean(dim=axis, keepdim=True)
    v = x.var(dim=axis, keepdim=True, unbiased=False)
    return (x - m) / torch.sqrt(v + eps)

def _scatter_add(tgt, idx, src, axis=0):
    return tgt.clone().index_add_(axis, idx, src)

def _segment_sum(src, seg, n):
    out = torch.zeros((n,) + src.shape[1:], dtype=src.dtype)
    return out.index_add_(0, seg, src)

def _pad(x, pw):
    flat = tuple((v for pair in reversed(pw) for v in pair))
    return torch.nn.functional.pad(x, flat)
kernel_name = 'standalone__tree_speculative_verify_tree_attention_over_candidate_token_tree__sampling'

def setup_inputs():

    _w = lambda a: (lambda t: t.to(torch.bfloat16) if t.is_floating_point() else t)(torch.as_tensor(a))
    B, Hq, Hkv, T, C, D = (8, 32, 16, 16, 8192, 128)
    tree_mask = torch.zeros((B, T, T), dtype=float)
    for b in range(B):
        parent = torch.zeros(T, dtype=torch.int64)
        for i in range(1, T):
            parent[i] = int(torch.randint(0, i, (1,)).item())
        for i in range(T):
            j = i
            tree_mask[b, i, j] = 1.0
            while j > 0:
                j = parent[j]
                tree_mask[b, i, j] = 1.0
    return {'q': _w((lambda *s: torch.randn(*s, dtype=torch.bfloat16) * 0.8)(B, Hq, T, D)), 'k_cache': _w((lambda *s: torch.randn(*s, dtype=torch.bfloat16) * 0.8)(B, Hkv, C, D)), 'v_cache': _w((lambda *s: torch.randn(*s, dtype=torch.bfloat16) * 0.05)(B, Hkv, C, D)), 'k_tree': _w((lambda *s: torch.randn(*s, dtype=torch.bfloat16) * 0.8)(B, Hkv, T, D)), 'v_tree': _w((lambda *s: torch.randn(*s, dtype=torch.bfloat16) * 0.05)(B, Hkv, T, D)), 'tree_mask': _w(tree_mask)}

def reference(q, k_cache, v_cache, k_tree, v_tree, tree_mask):
    B, Hq, T, D = q.shape
    Hkv, C = (k_cache.shape[1], k_cache.shape[2])
    rep = Hq // Hkv
    kc = (lambda x, n, axis: torch.repeat_interleave(x, n, dim=axis))(k_cache, rep, axis=1)
    vc = (lambda x, n, axis: torch.repeat_interleave(x, n, dim=axis))(v_cache, rep, axis=1)
    kt = (lambda x, n, axis: torch.repeat_interleave(x, n, dim=axis))(k_tree, rep, axis=1)
    vt = (lambda x, n, axis: torch.repeat_interleave(x, n, dim=axis))(v_tree, rep, axis=1)
    k = torch.concatenate([kc, kt], axis=2)
    v = torch.concatenate([vc, vt], axis=2)
    scale = D ** (-0.5)
    scores = torch.einsum('bhqd,bhkd->bhqk', q, k) * scale
    ctx_mask = torch.ones((B, 1, T, C), dtype=scores.dtype)
    tm = tree_mask[:, None, :, :].clone()
    full_mask = torch.concatenate([ctx_mask, tm], axis=-1)
    scores = scores + (1.0 - full_mask) * -1000000000.0
    p = _softmax(scores, axis=-1)
    return torch.einsum('bhqk,bhkd->bhqd', p, v)
```

```python
import sys, math, struct, argparse

NAME = "standalone__tree_speculative_verify_tree_attention_over_candidate_token_tree__sampling"

def f2u(x):
    return struct.unpack('<I', struct.pack('<f', x))[0]

HEADER = """; Kernarg layout for this problem (72 bytes, ptrs only, base s[0:1]):
"""

S_WG = 2
SRD_K, SRD_V, SRD_Q, SRD_KT, SRD_VT, SRD_M, SRD_O, SRD_WS, SRD_DBG = 24, 28, 32, 36, 40, 44, 48, 52, 56
S_WAVE, S_WBASE, S_OFF0, S_OFF1, S_CNT, S_C, S_PAIR, S_HALF = 60, 61, 62, 63, 64, 65, 66, 67
S_T0, S_T1, S_T2, S_T3 = 68, 69, 70, 71
S_STAMP = 72
S_EX = 80
S_ROLE = 82
V_LANE = 1
V_KVO = 2
V_VVO = 6
V_M, V_L, V_MC, V_AL = 7, 8, 9, 10
V_T = 11
V_KA = 16
V_VA = 24
V_TK = 28
V_T2 = 29
V_Q = 32
V_KF = 64
V_S = 96
V_P = 112
V_VF = 120
V_O = 152
NVGPR = 216

LDS_WAVE = 32768
KSLOT = [0, 8192]
VSLOT = [16384, 24576]
LDS_Q = 131072
LDS_ROLE = LDS_Q + 8192
LDS_TOTAL = LDS_ROLE + 256

WS_PAIR = 32768
WS_FLAG = 0x6000
WS_STAMP = 128 * WS_PAIR

def vr(a, n=1):
    return f"v{a}" if n == 1 else f"v[{a}:{a+n-1}]"
def sr(a, n=1):
    return f"s{a}" if n == 1 else f"s[{a}:{a+n-1}]"

class Gen:
    def __init__(self, depth=5, stamps=False, ticket_at=28, name=NAME, flags="nt"):
        self.L = []
        self.depth = depth
        self.stamps = stamps
        self.ticket_at = ticket_at
        self.name = name
        self.flags = flags
    def A(self, s):
        self.L.append("    " + s)
    def label(self, s):
        self.L.append(s + ":")
    def srd(self, d, p, nbytes, off_sgpr=None):
        if off_sgpr is None:
            self.A(f"s_mov_b32 s{d}, s{p}")
            self.A(f"s_and_b32 s{d+1}, s{p+1}, 0xffff")
        else:
            self.A(f"s_add_u32 s{d}, s{p}, s{off_sgpr}")
            self.A(f"s_addc_u32 s{d+1}, s{p+1}, 0")
            self.A(f"s_and_b32 s{d+1}, s{d+1}, 0xffff")
        self.A(f"s_mov_b32 s{d+2}, {nbytes}")
        self.A(f"s_mov_b32 s{d+3}, 0x20000")
    def stamp(self, i):
        if self.stamps:
            self.A(f"s_memrealtime s[{S_STAMP+2*i}:{S_STAMP+2*i+1}]")
            if i: self.A("s_waitcnt lgkmcnt(0)")

    def dma(self, kind, g, slot, throttle=True):
        out = []
        lds = (KSLOT if kind == 'K' else VSLOT)[slot] + (g // 4) * 4096
        if g % 4 == 0:
            out.append(f"s_add_u32 m0, s{S_WBASE}, {lds}")
        if throttle:
            out.append(f"s_waitcnt vmcnt({self.depth-1})")
        elif g % 4 == 0:
            out.append("s_nop 0")
        vo = V_KVO + (g % 4) if kind == 'K' else V_VVO
        srd = SRD_K if kind == 'K' else SRD_V
        so = S_OFF0 if g < 4 else S_OFF1
        out.append(f"buffer_load_dwordx4 v{vo}, s[{srd}:{srd+3}], s{so} offen offset:{(g%4)*1024} {self.flags} lds")
        return out

    @staticmethod
    def cost(ins):
        op = ins.split()[0]
        if op.startswith('v_mfma'): return 32
        if op in ('v_exp_f32', 'v_rcp_f32'): return 8
        if op == 's_nop': return 4 * (int(ins.split()[1]) + 1)
        if op.startswith('ds_read'): return 8
        if op.startswith('s_waitcnt'): return 60 if 'lgkm' in ins else 4
        if op.startswith('@'): return 0
        return 4

    def weave(self, comp, loads):
        total = sum(self.cost(i) for i in comp)
        n = len(loads)
        acc = 0; k = 0
        for ins in comp:
            while k < n and acc >= total * k / n:
                for x in loads[k]: self.A(x)
                k += 1
            if ins == '@vwait':
                self.A(f"s_waitcnt vmcnt({k})")
            else:
                self.A(ins)
            acc += self.cost(ins)
        while k < n:
            for x in loads[k]: self.A(x)
            k += 1

    def qk(self, slot, cinit=False):
        c = []
        for s in range(8):
            c.append(f"ds_read_b128 {vr(V_KF+4*s,4)}, v{V_KA+s} offset:{KSLOT[slot]}")
        for s in range(8):
            if s in (0, 2, 4, 6):
                c.append(f"s_waitcnt lgkmcnt({6-s})")
            cin = vr(V_S, 16) if (s > 0 or cinit) else "0"
            c.append(f"v_mfma_f32_32x32x16_bf16 {vr(V_S,16)}, {vr(V_KF+4*s,4)}, {vr(V_Q+4*s,4)}, {cin}")
        return c

    def vreads(self, slot, nu=2):
        c = []
        for u in range(nu):
            for blk in range(4):
                for v in range(2):
                    d = V_VF + (u * 4 + blk) * 4 + 2 * v
                    c.append(f"ds_read_b64_tr_b16 {vr(d,2)}, v{V_VA+blk} offset:{VSLOT[slot]-VSLOT[0] + (16*u+8*v)*256}")
        return c

    def softmax(self, n=16):
        c = []
        S = V_S; t0, t1 = V_T, V_T + 1
        c.append(f"v_max3_f32 v{t0}, v{S}, v{S+1}, v{S+2}")
        c.append(f"v_max3_f32 v{t1}, v{S+3}, v{S+4}, v{S+5}")
        i = 6
        tog = 0
        while i + 1 < n:
            t = t0 if tog == 0 else t1
            c.append(f"v_max3_f32 v{t}, v{S+i}, v{S+i+1}, v{t}")
            i += 2; tog ^= 1
        c.append(f"v_max3_f32 v{t0}, v{t0}, v{t1}, v{V_M}")
        c.append(f"v_mov_b32 v{t1}, v{t0}")
        c.append("s_nop 1")
        c.append(f"v_permlane32_swap_b32 v{t0}, v{t1}")
        c.append(f"v_max_f32 v{t0}, v{t0}, v{t1}")
        c.append(f"v_sub_f32 v{t1}, v{V_M}, v{t0}")
        c.append(f"v_mul_f32 v{V_MC}, s{S_C}, v{t0}")
        c.append(f"v_mul_f32 v{t1}, s{S_C}, v{t1}")
        c.append(f"v_mov_b32 v{V_M}, v{t0}")
        c.append(f"v_exp_f32 v{V_AL}, v{t1}")
        for r in range(n):
            c.append(f"v_fma_f32 v{S+r}, v{S+r}, s{S_C}, -v{V_MC}")
        for r in range(n):
            c.append(f"v_exp_f32 v{S+r}, v{S+r}")
        c.append(f"v_mul_f32 v{V_L}, v{V_L}, v{V_AL}")
        for r in range(0, n, 2):
            c.append(f"v_cvt_pk_bf16_f32 v{V_P+r//2}, v{S+r}, v{S+r+1}")
        c.append(f"v_add_f32 v{t0}, v{S}, v{S+1}")
        c.append(f"v_add_f32 v{t1}, v{S+2}, v{S+3}")
        for r in range(4, n, 2):
            c.append(f"v_add_f32 v{t0}, v{t0}, v{S+r}")
            c.append(f"v_add_f32 v{t1}, v{t1}, v{S+r+1}")
        c.append(f"v_add_f32 v{V_L}, v{V_L}, v{t0}")
        c.append(f"v_add_f32 v{V_L}, v{V_L}, v{t1}")
        return c

    def rescale(self):
        return [f"v_mul_f32 v{V_O+r}, v{V_O+r}, v{V_AL}" for r in range(64)]

    def pv(self, nu=2):
        c = []
        for u in range(nu):
            for blk in range(4):
                o = vr(V_O + 16 * blk, 16)
                c.append(f"v_mfma_f32_32x32x16_bf16 {o}, {vr(V_VF+(u*4+blk)*4,4)}, {vr(V_P+4*u,4)}, {o}")
        return c

    def tile(self, slot, loads):
        c = []
        c += self.qk(slot)
        c += ["s_nop 7", "s_nop 3"]
        c += self.softmax()
        c += ['@vwait']
        c += self.vreads(slot)
        c += self.rescale()
        c += ["s_waitcnt lgkmcnt(0)"]
        c += self.pv()
        self.A("s_waitcnt vmcnt(8)")
        self.weave(c, loads)

    def advance(self):
        self.A(f"s_add_u32 s{S_OFF0}, s{S_OFF0}, 32768")
        self.A(f"s_add_u32 s{S_OFF1}, s{S_OFF1}, 32768")

    def build(self):
        A = self.A
        lds = LDS_TOTAL
        self.L.append(HEADER + f"; @launch grid=(256,1,1) block=(256,1,1) lds={lds}")
        self.L.append('.amdgcn_target "amdgcn-amd-amdhsa--gfx950"')
        self.L.append(".text")
        self.L.append(f".globl {self.name}_kernel")
        self.L.append(".p2align 8")
        self.L.append(f".type {self.name}_kernel,@function")
        self.label(f"{self.name}_kernel")
        A("s_cmp_ge_u32 s2, 256")
        A("s_cbranch_scc1 L_done")
        A("s_load_dwordx16 s[4:19], s[0:1], 0")
        A("s_load_dwordx2 s[20:21], s[0:1], 64")
        self.stamp(0)
        A(f"v_lshrrev_b32 v{V_T}, 6, v0")
        A(f"v_and_b32 v{V_LANE}, 63, v0")
        A(f"v_readfirstlane_b32 s{S_WAVE}, v{V_T}")
        A(f"s_lshr_b32 s{S_PAIR}, s2, 1")
        A(f"s_and_b32 s{S_HALF}, s2, 1")
        A(f"s_mov_b32 s{S_C}, {hex(f2u(128**-0.5 * math.log2(math.e)))}")
        row, cp = V_T, V_T + 1
        A(f"v_lshrrev_b32 v{row}, 4, v{V_LANE}")
        A(f"v_and_b32 v{cp}, 15, v{V_LANE}")
        A(f"s_lshl_b32 s{S_WBASE}, s{S_WAVE}, 15")
        A(f"s_lshl_b32 s{S_OFF0}, s{S_WAVE}, 13")
        A(f"s_add_u32 s{S_OFF1}, s{S_OFF0}, 4096")
        A(f"v_xor_b32 v{V_T+2}, v{row}, v{cp}")
        A(f"v_lshlrev_b32 v{V_T+3}, 8, v{row}")
        A(f"v_lshl_add_u32 v{V_KVO}, v{V_T+2}, 4, v{V_T+3}")
        for g in range(1, 4):
            A(f"v_xor_b32 v{V_KVO+g}, {g*64}, v{V_KVO}")
        A(f"v_lshlrev_b32 v{V_T+2}, 2, v{row}")
        A(f"v_xor_b32 v{V_T+2}, v{V_T+2}, v{cp}")
        A(f"v_lshl_add_u32 v{V_VVO}, v{V_T+2}, 4, v{V_T+3}")
        A(f"s_lshl_b32 s{S_T0}, s{S_WAVE}, 7")
        A(f"s_and_b32 s{S_T0}, s{S_T0}, 128")
        A(f"v_xor_b32 v{V_T2}, s{S_T0}, v{V_KVO}")
        A(f"v_xor_b32 v{V_T2+1}, s{S_T0}, v{V_KVO+1}")
        A(f"s_lshl_b32 s{S_T0}, s{S_PAIR}, 21")
        A(f"s_lshl_b32 s{S_T1}, s{S_HALF}, 20")
        A(f"s_add_u32 s{S_T0}, s{S_T0}, s{S_T1}")
        A(f"s_lshl_b32 s{S_T1}, s{S_PAIR}, 13")
        A(f"s_lshl_b32 s{S_T2}, s{S_PAIR}, 15")
        A("s_waitcnt lgkmcnt(0)")
        self.srd(SRD_Q, 4, 8192, S_T1)
        self.srd(SRD_K, 6, 1 << 20, S_T0)
        self.srd(SRD_WS, 20, WS_PAIR, S_T2)
        A(f"s_lshl_b32 s{S_T3}, s{S_WAVE}, 11")
        A(f"s_add_u32 m0, s{S_T3}, {LDS_Q}")
        self.srd(SRD_V, 8, 1 << 20, S_T0)
        A(f"buffer_load_dwordx4 v{V_T2}, s[{SRD_Q}:{SRD_Q+3}], s{S_T3} offen lds")
        A(f"buffer_load_dwordx4 v{V_T2+1}, s[{SRD_Q}:{SRD_Q+3}], s{S_T3} offen offset:1024 lds")
        A(f"s_lshl_b32 s{S_T3}, s{S_HALF}, 10")
        A(f"s_lshl_b32 s{S_T2}, s{S_WAVE}, 7")
        A(f"s_add_u32 s{S_T3}, s{S_T3}, s{S_T2}")
        A(f"s_add_u32 s{S_T3}, s{S_T3}, {WS_FLAG}")
        A(f"v_mov_b32 v{V_T2+2}, 0")
        A(f"s_mov_b64 s[{S_EX}:{S_EX+1}], exec")
        A("s_mov_b64 exec, 1")
        A(f"buffer_store_dword v{V_T2+2}, off, s[{SRD_WS}:{SRD_WS+3}], s{S_T3} sc0 sc1")
        A(f"s_mov_b64 exec, s[{S_EX}:{S_EX+1}]")
        A(f"s_lshl_b32 s{S_T2}, s{S_HALF}, 2")
        A(f"s_add_u32 s{S_T2}, s{S_T2}, s{S_WAVE}")
        A(f"s_cmp_eq_u32 s{S_T2}, 7")
        A("s_cbranch_scc0 L_notree_ld")
        A(f"s_lshl_b32 s{S_T2}, s{S_PAIR}, 12")
        self.srd(SRD_KT, 10, 4096, S_T2)
        self.srd(SRD_VT, 12, 4096, S_T2)
        A(f"s_lshr_b32 s{S_T2}, s{S_PAIR}, 4")
        A(f"s_lshl_b32 s{S_T2}, s{S_T2}, 9")
        self.srd(SRD_M, 14, 512, S_T2)
        A(f"s_add_u32 m0, s{S_WBASE}, {KSLOT[1]}")
        A(f"v_and_b32 v{V_T+2}, 15, v{V_LANE}")
        for g in range(4):
            A(f"buffer_load_dwordx4 v{V_KVO+g}, s[{SRD_KT}:{SRD_KT+3}], 0 offen offset:{g*1024} lds")
        A(f"s_add_u32 m0, s{S_WBASE}, {VSLOT[1]}")
        A(f"v_lshrrev_b32 v{V_T+3}, 5, v{V_LANE}")
        for g in range(4):
            A(f"buffer_load_dwordx4 v{V_VVO}, s[{SRD_VT}:{SRD_VT+3}], 0 offen offset:{g*1024} lds")
        A(f"v_lshlrev_b32 v{V_T+2}, 5, v{V_T+2}")
        A(f"v_lshl_add_u32 v{V_T+2}, v{V_T+3}, 3, v{V_T+2}")
        A(f"buffer_load_dwordx2 {vr(V_P,2)}, v{V_T+2}, s[{SRD_M}:{SRD_M+3}], 0 offen")
        A(f"buffer_load_dwordx2 {vr(V_P+2,2)}, v{V_T+2}, s[{SRD_M}:{SRD_M+3}], 0 offen offset:16")
        self.label("L_notree_ld")
        nfree = min(self.depth, 8)
        for g in range(nfree):
            for x in self.dma('K', g, 0, throttle=False): A(x)
        self.srd(SRD_O, 16, 8192, S_T1)
        self.srd(SRD_DBG, 18, 256)
        r, h = V_T, V_T + 1
        A(f"v_and_b32 v{r}, 31, v{V_LANE}")
        A(f"v_lshrrev_b32 v{h}, 5, v{V_LANE}")
        A(f"v_and_b32 v{V_T+2}, 15, v{r}")
        A(f"v_xor_b32 v{V_T+2}, v{V_T+2}, v{h}")
        A(f"v_lshlrev_b32 v{V_T+3}, 8, v{r}")
        A(f"v_lshl_add_u32 v{V_T+3}, v{V_T+2}, 4, v{V_T+3}")
        for s in range(8):
            A(f"v_xor_b32 v{V_KA+s}, {s*32}, v{V_T+3}")
        i4 = V_T + 2
        A(f"v_bfe_u32 v{i4}, v{V_LANE}, 2, 2")
        A(f"v_lshl_add_u32 v{V_T+3}, v{h}, 2, v{i4}")
        A(f"v_lshlrev_b32 v{V_T+3}, 8, v{V_T+3}")
        A(f"v_lshl_add_u32 v{V_T+3}, v{i4}, 6, v{V_T+3}")
        A(f"v_bfe_u32 v{V_T+4}, v{V_LANE}, 4, 1")
        A(f"v_lshl_add_u32 v{V_T+3}, v{V_T+4}, 5, v{V_T+3}")
        A(f"v_and_b32 v{V_T+4}, 3, v{V_LANE}")
        A(f"v_lshl_add_u32 v{V_T+3}, v{V_T+4}, 3, v{V_T+3}")
        A(f"s_add_u32 s{S_T2}, s{S_WBASE}, {VSLOT[0]}")
        for blk in range(4):
            A(f"v_xor_b32 v{V_VA+blk}, {blk*64}, v{V_T+3}")
        for blk in range(4):
            A(f"v_add_u32 v{V_VA+blk}, s{S_T2}, v{V_VA+blk}")
        for r_ in range(64):
            A(f"v_mov_b32 v{V_O+r_}, 0")
        A(f"v_mov_b32 v{V_M}, {hex(f2u(-1e30))}")
        A(f"v_mov_b32 v{V_L}, 0")
        A(f"s_mov_b32 s{S_T2}, {LDS_Q}")
        for s in range(8):
            A(f"v_add_u32 v{V_KF+s}, s{S_T2}, v{V_KA+s}")
        for s in range(8):
            A(f"v_add_u32 v{V_KA+s}, s{S_WBASE}, v{V_KA+s}")
        A(f"s_waitcnt vmcnt({nfree})")
        A("s_barrier")
        for s in range(8):
            A(f"ds_read_b128 {vr(V_Q+4*s,4)}, v{V_KF+s}")
        rest = [self.dma('K', g, 0) for g in range(nfree, 8)] + [self.dma('V', g, 0) for g in range(8)]
        A(f"s_lshl_b32 s{S_T2}, s{S_HALF}, 2")
        A(f"s_add_u32 s{S_T2}, s{S_T2}, s{S_WAVE}")
        A(f"s_cmp_eq_u32 s{S_T2}, 7")
        A("s_cbranch_scc1 L_tree")
        for grp in rest:
            for x in grp: A(x)
        A("s_waitcnt lgkmcnt(0)")
        A("s_branch L_main")
        self.label("L_tree")
        c = []
        KM = 1e9 * math.sqrt(128.0)
        c.append(f"s_mov_b32 s{S_T2}, {hex(f2u(KM))}")
        c.append(f"v_mov_b32 v{V_T}, s{S_T2}")
        for j in range(4):
            c.append(f"v_lshlrev_b32 v{V_S+2*j}, 16, v{V_P+j}")
            c.append(f"v_and_b32 v{V_S+2*j+1}, 0xffff0000, v{V_P+j}")
        for r_ in range(8):
            c.append(f"v_fma_f32 v{V_S+r_}, v{V_S+r_}, v{V_T}, -v{V_T}")
        for r_ in range(8, 16):
            c.append(f"v_mov_b32 v{V_S+r_}, 0")
        c.append("s_waitcnt lgkmcnt(0)")
        c += self.qk(1, cinit=True)
        c += self.vreads(1, nu=1)
        c += ["s_nop 3"]
        c += self.softmax(8)
        c += ["s_waitcnt lgkmcnt(0)"]
        c += self.pv(nu=1)
        self.weave(c, rest)
        self.label("L_main")
        self.stamp(1)
        A(f"s_mov_b32 s{S_CNT}, 0")
        self.label("L_loop")
        for slot in range(2):
            self.advance()
            loads = [self.dma('K', g, slot ^ 1) for g in range(8)] + [self.dma('V', g, slot ^ 1) for g in range(8)]
            self.tile(slot, loads)
        A(f"s_add_u32 s{S_CNT}, s{S_CNT}, 2")
        A(f"s_cmp_lt_u32 s{S_CNT}, 30")
        A("s_cbranch_scc1 L_loop")
        A(f"s_cmp_eq_u32 s{S_WAVE}, 0")
        A("s_cbranch_scc0 L_noticket")
        A(f"s_and_b32 s{S_T0}, s{S_PAIR}, 1")
        A(f"s_lshl_b32 s{S_T0}, s{S_T0}, 4")
        A(f"s_lshl_b32 s{S_T1}, 1, s{S_T0}")
        A(f"v_mov_b32 v{V_TK}, s{S_T1}")
        A(f"s_lshr_b32 s{S_T1}, s{S_PAIR}, 1")
        A(f"s_lshl_b32 s{S_T1}, s{S_T1}, 2")
        A(f"s_mov_b64 s[{S_EX}:{S_EX+1}], exec")
        A("s_mov_b64 exec, 1")
        A(f"buffer_atomic_add v{V_TK}, off, s[{SRD_DBG}:{SRD_DBG+3}], s{S_T1} sc0 sc1")
        A(f"s_mov_b64 exec, s[{S_EX}:{S_EX+1}]")
        self.label("L_noticket")
        self.advance()
        loads = [self.dma('K', g, 1) for g in range(8)] + [self.dma('V', g, 1) for g in range(8)]
        self.tile(0, loads)
        self.tile(1, [])
        self.stamp(2)
        A(f"v_mov_b32 v{V_T}, v{V_L}")
        A(f"v_lshlrev_b32 v{V_T+2}, 4, v{V_LANE}")
        A(f"v_lshlrev_b32 v{V_T+3}, 3, v{V_LANE}")
        A(f"v_permlane32_swap_b32 v{V_T}, v{V_L}")
        A(f"v_add_u32 v{V_T2}, s{S_WBASE}, v{V_T+2}")
        A(f"v_add_u32 v{V_T2+1}, s{S_WBASE}, v{V_T+3}")
        A(f"v_add_f32 v{V_S+1}, v{V_T}, v{V_L}")
        A(f"v_mov_b32 v{V_S}, v{V_M}")
        A(f"ds_write_b64 v{V_T2+1}, {vr(V_S,2)} offset:16384")
        A(f"s_cmp_eq_u32 s{S_WAVE}, 0")
        A("s_cbranch_scc0 L_norole")
        A(f"v_lshrrev_b32 v{V_TK}, s{S_T0}, v{V_TK}")
        A(f"v_and_b32 v{V_TK}, 0xffff, v{V_TK}")
        A(f"v_mov_b32 v{V_T}, {LDS_ROLE}")
        A(f"s_mov_b64 s[{S_EX}:{S_EX+1}], exec")
        A("s_mov_b64 exec, 1")
        A(f"ds_write_b32 v{V_T}, v{V_TK}")
        A(f"s_mov_b64 exec, s[{S_EX}:{S_EX+1}]")
        self.label("L_norole")
        A("s_nop 3")
        for blk in range(4):
            for j in range(4):
                A(f"ds_write_b128 v{V_T2}, {vr(V_O+16*blk+4*j,4)} offset:{blk*4096+j*1024}")
        A(f"s_lshl_b32 s{S_T2}, s{S_WAVE}, 12")
        A(f"v_add_u32 v{V_T+2}, s{S_T2}, v{V_T+2}")
        A(f"v_add_u32 v{V_T2}, 0x10000, v{V_T+2}")
        A(f"v_add_u32 v{V_T2+1}, 0x10000, v{V_T+3}")
        A(f"v_mov_b32 v{V_T}, {LDS_ROLE}")
        A("s_waitcnt lgkmcnt(0)")
        A("s_barrier")
        ML = V_S
        A(f"ds_read_b64 {vr(ML,2)}, v{V_T+3} offset:16384")
        A(f"ds_read_b64 {vr(ML+2,2)}, v{V_T+3} offset:{32768+16384}")
        A(f"ds_read_b64 {vr(ML+4,2)}, v{V_T2+1} offset:16384")
        A(f"ds_read_b64 {vr(ML+6,2)}, v{V_T2+1} offset:{32768+16384}")
        A(f"ds_read_b32 v{V_TK}, v{V_T}")
        for w in range(4):
            a = V_T + 2 if w < 2 else V_T2
            for j in range(4):
                A(f"ds_read_b128 {vr(V_O+16*w+4*j,4)}, v{a} offset:{(w&1)*32768 + j*1024}")
        A("s_waitcnt lgkmcnt(15)")
        A("s_waitcnt lgkmcnt(12)")
        A(f"v_max3_f32 v{V_M}, v{ML}, v{ML+2}, v{ML+4}")
        A(f"v_max_f32 v{V_M}, v{V_M}, v{ML+6}")
        F = V_S + 8
        for w in range(4):
            A(f"v_sub_f32 v{F+w}, v{ML+2*w}, v{V_M}")
        for w in range(4):
            A(f"v_mul_f32 v{F+w}, s{S_C}, v{F+w}")
        for w in range(4):
            A(f"v_exp_f32 v{F+w}, v{F+w}")
        A(f"v_readfirstlane_b32 s{S_ROLE}, v{V_TK}")
        A(f"v_mul_f32 v{V_L}, v{F}, v{ML+1}")
        for w in range(1, 4):
            A(f"v_fmac_f32 v{V_L}, v{F+w}, v{ML+2*w+1}")
        for r_ in range(16):
            A(f"v_mul_f32 v{V_O+r_}, v{F}, v{V_O+r_}")
        for w in range(1, 4):
            A(f"s_waitcnt lgkmcnt({12-4*w})")
            for r_ in range(16):
                A(f"v_fmac_f32 v{V_O+r_}, v{F+w}, v{V_O+16*w+r_}")
        A(f"s_lshl_b32 s{S_T2}, s{S_WAVE}, 9")
        A(f"s_add_u32 s{S_T2}, s{S_T2}, 16384")
        A(f"s_cmp_eq_u32 s{S_ROLE}, 0")
        A("s_cbranch_scc0 L_consumer")
        A(f"v_mov_b32 v{V_S}, v{V_M}")
        A(f"v_mov_b32 v{V_S+1}, v{V_L}")
        for j in range(4):
            A(f"buffer_store_dwordx4 {vr(V_O+4*j,4)}, v{V_T+2}, s[{SRD_WS}:{SRD_WS+3}], 0 offen offset:{j*1024} sc0 sc1")
        A(f"buffer_store_dwordx2 {vr(V_S,2)}, v{V_T+3}, s[{SRD_WS}:{SRD_WS+3}], s{S_T2} offen sc0 sc1")
        A(f"v_mov_b32 v{V_T}, 1")
        A("s_waitcnt vmcnt(0)")
        A("s_mov_b64 exec, 1")
        A(f"buffer_store_dword v{V_T}, off, s[{SRD_WS}:{SRD_WS+3}], s{S_T3} sc0 sc1")
        if self.stamps:
            A("s_branch L_stamps")
        else:
            A("s_endpgm")
        self.label("L_consumer")
        A(f"s_xor_b32 s{S_T3}, s{S_T3}, 1024")
        A(f"s_mov_b32 s{S_CNT}, 0")
        self.label("L_poll")
        A(f"s_add_u32 s{S_CNT}, s{S_CNT}, 1")
        A(f"s_cmp_gt_u32 s{S_CNT}, 0x40000")
        A("s_cbranch_scc1 L_done")
        A(f"buffer_load_dword v{V_T}, off, s[{SRD_WS}:{SRD_WS+3}], s{S_T3} sc0 sc1")
        A("s_waitcnt vmcnt(0)")
        A(f"v_readfirstlane_b32 s{S_T0}, v{V_T}")
        A("s_nop 3")
        A(f"s_cmp_eq_u32 s{S_T0}, 1")
        A("s_cbranch_scc0 L_poll")
        A(f"buffer_load_dwordx2 {vr(V_S,2)}, v{V_T+3}, s[{SRD_WS}:{SRD_WS+3}], s{S_T2} offen sc0 sc1")
        for j in range(4):
            A(f"buffer_load_dwordx4 {vr(V_O+16+4*j,4)}, v{V_T+2}, s[{SRD_WS}:{SRD_WS+3}], 0 offen offset:{j*1024} sc0 sc1")
        A(f"v_and_b32 v{V_T2}, 31, v{V_LANE}")
        A(f"v_lshrrev_b32 v{V_T2+1}, 5, v{V_LANE}")
        A(f"v_lshlrev_b32 v{V_T2}, 8, v{V_T2}")
        A(f"v_lshl_add_u32 v{V_T2}, v{V_T2+1}, 4, v{V_T2}")
        A(f"s_lshl_b32 s{S_T1}, s{S_WAVE}, 6")
        A("s_waitcnt vmcnt(4)")
        A(f"v_max_f32 v{V_T}, v{V_M}, v{V_S}")
        A(f"v_sub_f32 v{F}, v{V_M}, v{V_T}")
        A(f"v_sub_f32 v{F+1}, v{V_S}, v{V_T}")
        A(f"v_mul_f32 v{F}, s{S_C}, v{F}")
        A(f"v_mul_f32 v{F+1}, s{S_C}, v{F+1}")
        A(f"v_exp_f32 v{F}, v{F}")
        A(f"v_exp_f32 v{F+1}, v{F+1}")
        A("s_nop 0")
        A(f"v_mul_f32 v{V_L}, v{F}, v{V_L}")
        A(f"v_fmac_f32 v{V_L}, v{F+1}, v{V_S+1}")
        A(f"v_rcp_f32 v{V_T}, v{V_L}")
        A("s_nop 0")
        A(f"v_mul_f32 v{F}, v{F}, v{V_T}")
        A(f"v_mul_f32 v{F+1}, v{F+1}, v{V_T}")
        for r_ in range(16):
            A(f"v_mul_f32 v{V_O+r_}, v{F}, v{V_O+r_}")
        A("s_waitcnt vmcnt(0)")
        for r_ in range(16):
            A(f"v_fmac_f32 v{V_O+r_}, v{F+1}, v{V_O+16+r_}")
        for k in range(8):
            A(f"v_cvt_pk_bf16_f32 v{V_P+k}, v{V_O+2*k}, v{V_O+2*k+1}")
        A("s_nop 1")
        for j in (0, 2):
            A(f"v_permlane32_swap_b32 v{V_P+2*j}, v{V_P+2*j+2}")
            A(f"v_permlane32_swap_b32 v{V_P+2*j+1}, v{V_P+2*j+3}")
        for j in (0, 2):
            A(f"buffer_store_dwordx4 {vr(V_P+2*j,4)}, v{V_T2}, s[{SRD_O}:{SRD_O+3}], s{S_T1} offen offset:{j*16}")
        if self.stamps:
            self.label("L_stamps")
            A("s_waitcnt vmcnt(0)")
            self.stamp(3)
            A(f"s_getreg_b32 s{S_T0}, hwreg(HW_REG_XCC_ID)")
            A("s_waitcnt lgkmcnt(0)")
            A("s_mov_b64 exec, 1")
            A(f"s_lshl_b32 s{S_T0}, s{S_T0}, 8")
            A(f"s_or_b32 s{S_T0}, s{S_T0}, s{S_ROLE}")
            for i in range(4):
                A(f"v_mov_b32 v{V_S+i}, s{S_STAMP+2*i}")
            A(f"v_mov_b32 v{V_S+4}, s{S_T0}")
            A(f"s_lshl_b32 s{S_T0}, s{S_HALF}, 2")
            A(f"s_add_u32 s{S_T0}, s{S_T0}, s{S_WAVE}")
            A(f"s_lshl_b32 s{S_T0}, s{S_T0}, 5")
            A(f"s_add_u32 s{S_T0}, s{S_T0}, 0x7000")
            A(f"buffer_store_dwordx4 {vr(V_S,4)}, off, s[{SRD_WS}:{SRD_WS+3}], s{S_T0}")
            A(f"buffer_store_dword v{V_S+4}, off, s[{SRD_WS}:{SRD_WS+3}], s{S_T0} offset:16")
        self.label("L_done")
        A("s_endpgm")
        self.L.append('.section .rodata,"a"')
        self.L.append(".p2align 6")
        self.L.append(f".amdhsa_kernel {self.name}_kernel")
        self.L.append(f"  .amdhsa_next_free_vgpr {NVGPR}")
        self.L.append("  .amdhsa_next_free_sgpr 96")
        self.L.append(f"  .amdhsa_accum_offset {NVGPR}")
        self.L.append("  .amdhsa_group_segment_fixed_size 0")
        self.L.append("  .amdhsa_kernarg_size 72")
        self.L.append("  .amdhsa_user_sgpr_count 2")
        self.L.append("  .amdhsa_user_sgpr_kernarg_segment_ptr 1")
        self.L.append("  .amdhsa_system_sgpr_workgroup_id_x 1")
        self.L.append(".end_amdhsa_kernel")
        return "\n".join(self.L) + "\n"

def gen(name=NAME, **kw):
    return Gen(name=name, **kw).build()

if __name__ == '__main__':
    ap = argparse.ArgumentParser()
    ap.add_argument('--depth', type=int, default=5)
    ap.add_argument('--stamps', action='store_true')
    ap.add_argument('-o', default=None)
    a = ap.parse_args()
    s = gen(depth=a.depth, stamps=a.stamps)
    if a.o: open(a.o, 'w').write(s)
    else: print(s)
```

```python
import sys, math, struct

NAME = "standalone__tree_speculative_verify_tree_attention_over_candidate_token_tree__sampling"

def f2u(x):
    return struct.unpack('<I', struct.pack('<f', x))[0]

HEADER = """; Kernarg layout for this problem (72 bytes, ptrs only, base s[0:1]):
"""

P_Q, P_K, P_V, P_KT, P_VT, P_M, P_O, P_DBG, P_WS = 4, 8, 10, 12, 14, 16, 18, 20, 22
SRD_K, SRD_V, SRD_Q, SRD_KT, SRD_VT, SRD_M, SRD_O, SRD_WS, SRD_DBG = 24, 28, 32, 36, 40, 44, 48, 52, 56
SRD_FB = SRD_Q
S_BOOST, S_CMP = 3, 6
S_WAVE, S_WBASE, S_OFF0, S_OFF1, S_CNT, S_C, S_PAIR, S_HALF = 60, 61, 62, 63, 64, 65, 66, 67
S_T0, S_T1, S_T2, S_T3 = 68, 69, 70, 71
S_ROLE, S_HAVE, S_PASS, S_XCC, S_FLAGO, S_FLAGP, S_MLO, S_SH = 72, 73, 74, 75, 76, 77, 78, 79
S_STAMP = 80
S_M0 = 92
S_THR, S_FORCE = 100, 101
NSGPR = 102
R_UNK, R_PUB, R_CON, R_SOLO = 0, 1, 2, 3
V_LANE = 1
V_KVO = 2
V_VVO = 6
V_M, V_L, V_MC, V_AL = 7, 8, 9, 10
V_T = 11
V_KA = 16
V_VA = 24
V_TK, V_RA, V_FL, V_L16 = 28, 29, 30, 31
V_Q = 32
V_KF = 64
V_S = 96
V_P = 112
V_VF = 120
V_O = 152
V_PO = 216
V_PML = 232
V_L8 = 234
V_T2 = 235
V_MT, V_IDX, V_PRB, V_FBL, V_FBS, V_FT = 240, 241, 242, 243, 244, 245
NVGPR = 248

KSLOT = [0, 8192]
VSLOT = [16384, 24576]
LDS_Q = 131072
LDS_ROLE = LDS_Q + 8192
LDS_TOTAL = LDS_ROLE + 256
WS_PAIR = 32768
WS_FLAG = 0x6000
WS_FB = 128 * WS_PAIR
CSCALE = 128 ** -0.5 * math.log2(math.e)

def vr(a, n=1):
    return f"v{a}" if n == 1 else f"v[{a}:{a+n-1}]"
def srd(a):
    return f"s[{a}:{a+3}]"

class Gen:
    def __init__(self, name=NAME, depth=5, hi=6, stamps=False, noepi=False, xorpair=8, force_solo=False,
                 fb=True, lead=4, thr=16, use=8, lazy=8.0, lastdeep=True, evenmask=0, oddmask=0, nocomp=0, st1=False, st2=False, bar=True, common=True, pahead=False, deepc=False, cmask=0):
        self.L = []
        self.__dict__.update(name=name, depth=depth, hi=hi, stamps=stamps, noepi=noepi, xorpair=xorpair, force_solo=force_solo,
                             fb=fb, lead=lead, thr=thr, use=use, lazy=lazy, lastdeep=lastdeep, evenmask=evenmask, oddmask=oddmask,
                             nocomp=nocomp, st1=st1, st2=st2, bar=bar, common=common, pahead=pahead, deepc=deepc, cmask=cmask)
        self.uid = 0
        self.ool = []
    def A(self, s):
        self.L.append("    " + s)
    def label(self, s):
        self.L.append(s + ":")
    def emit(self, x):
        if x.startswith('@L_'): self.label(x[1:])
        else: self.A(x)
    def newlab(self):
        self.uid += 1
        return f"L_u{self.uid}"
    def srd_ins(self, d, p, nbytes, off_sgpr=None):
        o = []
        if off_sgpr is None:
            o += [f"s_mov_b32 s{d}, s{p}", f"s_and_b32 s{d+1}, s{p+1}, 0xffff"]
        else:
            o += [f"s_add_u32 s{d}, s{p}, s{off_sgpr}", f"s_addc_u32 s{d+1}, s{p+1}, 0", f"s_and_b32 s{d+1}, s{d+1}, 0xffff"]
        o += [f"s_mov_b32 s{d+2}, {nbytes}", f"s_mov_b32 s{d+3}, 0x20000"]
        return o
    def mk_srd(self, *a):
        for x in self.srd_ins(*a): self.A(x)
    def stamp(self, i):
        if self.stamps:
            self.A(f"s_memrealtime s[{S_STAMP+2*i}:{S_STAMP+2*i+1}]")
            if i: self.A("s_waitcnt lgkmcnt(0)")

    def load_ins(self, kind, n):
        g = (n >> 1) + 4 * (n & 1)
        vo = V_KVO + (g % 4) if kind == 'K' else V_VVO
        sd = SRD_K if kind == 'K' else SRD_V
        so = S_OFF0 if g < 4 else S_OFF1
        return f"buffer_load_dwordx4 v{vo}, {srd(sd)}, s{so} offen offset:{(g%4)*1024} nt lds"
    def lds_of(self, kind, n, slot):
        return (KSLOT if kind == 'K' else VSLOT)[slot] + (n & 1) * 4096

    def dma(self, kind, n, slot, wait):
        return [f"s_add_u32 m0, s{S_WBASE}, {self.lds_of(kind, n, slot)}",
                f"s_waitcnt vmcnt({wait})" if wait is not None else "s_nop 0", self.load_ins(kind, n)]

    def loop_loads(self, slot):
        out = []
        for k in range(16):
            kind, n = ('K', k) if k < 8 else ('V', k - 8)
            grp = []
            end = self.newlab(); go = self.newlab()
            if slot == 1: grp.append(f"s_cbranch_vccnz {end}")
            if self.fb and k == self.use:
                grp += [f"v_sub_u32 v{V_FT}, v{V_PRB}, v{V_IDX}",
                        f"v_cmp_gt_u32 s[{S_CMP}:{S_CMP+1}], 3, v{V_FT}",
                        f"s_lshr_b32 s{S_FORCE}, s{S_FORCE}, 1",
                        f"s_and_b32 s{S_T1}, s{S_FORCE}, 1",
                        f"s_bcnt1_i32_b64 s{S_T0}, s[{S_CMP}:{S_CMP+1}]",
                        f"s_cmp_ge_u32 s{S_T0}, s{S_THR}",
                        f"s_cselect_b32 s{S_BOOST}, 1, s{S_T1}",
                        f"s_cmp_eq_u32 s{S_BOOST}, 1"]
            if self.fb and k == 0:
                grp += [f"v_add_u32 v{V_IDX}, 1, v{V_IDX}",
                        f"buffer_load_dword v{V_PRB}, v{V_FBL}, {srd(SRD_FB)}, 0 offen sc1"]
            if self.fb and k == self.lead:
                grp.append(f"buffer_store_dword v{V_IDX}, v{V_FBS}, {srd(SRD_FB)}, 0 offen")
            grp.append(f"s_mov_b32 m0, s{S_M0 + self.lds_of(kind, n, slot ^ 1) // 4096}")
            cnt = lambda w: sum(1 for p in (0, self.lead) if (k - p) % 16 < w) if self.fb else 0
            if slot == 0 and self.lastdeep: grp.append(f"s_cbranch_vccnz {go}")
            if self.fb:
                grp += [f"s_waitcnt vmcnt({self.hi - 1 + cnt(self.hi)})", f"s_cbranch_scc1 {go}"]
            grp += [f"s_waitcnt vmcnt({self.depth - 1 + cnt(self.depth)})", f"@{go}", self.load_ins(kind, n), f"@{end}"]
            out.append(grp)
        return out

    @staticmethod
    def cost(ins):
        op = ins.split()[0]
        if op.startswith('v_mfma'): return 32
        if op in ('v_exp_f32', 'v_rcp_f32'): return 8
        if op == 's_nop': return 4 * (int(ins.split()[1]) + 1)
        if op.startswith('ds_read'): return 8
        if op.startswith('s_waitcnt'): return 40 if 'lgkm' in ins else 4
        if op.startswith('@'): return 0
        return 4

    def weave(self, comp, loads, lastable=False):
        cst = lambda e: sum(self.cost(i) for i in e) if isinstance(e, list) else self.cost(e)
        total = sum(cst(i) for i in comp)
        n = len(loads); acc = 0; k = 0
        for ins in comp:
            while k < n and acc >= total * k / n:
                for x in loads[k]: self.emit(x)
                k += 1
            if ins == '@vwait':
                self.A(f"s_waitcnt vmcnt({k})")
                if lastable:
                    l = self.newlab()
                    self.A(f"s_cbranch_vccz {l}")
                    self.A("s_waitcnt vmcnt(0)")
                    self.label(l)
            elif isinstance(ins, list):
                for x in ins: self.emit(x)
            else:
                self.emit(ins)
            acc += cst(ins)
        while k < n:
            for x in loads[k]: self.emit(x)
            k += 1

    def qk(self, slot, cinit=False):
        c = [f"ds_read_b128 {vr(V_KF+4*s,4)}, v{V_KA+s} offset:{KSLOT[slot]}" for s in range(8)]
        for s in range(8):
            if s % 2 == 0: c.append(f"s_waitcnt lgkmcnt({6-s})")
            cin = vr(V_S, 16) if (s > 0 or cinit) else "0"
            c.append(f"v_mfma_f32_32x32x16_bf16 {vr(V_S,16)}, {vr(V_KF+4*s,4)}, {vr(V_Q+4*s,4)}, {cin}")
        return c

    def vreads(self, slot, nu=2):
        c = []
        for u in range(nu):
            for blk in range(4):
                for v in range(2):
                    d = V_VF + (u * 4 + blk) * 4 + 2 * v
                    c.append(f"ds_read_b64_tr_b16 {vr(d,2)}, v{V_VA+blk} offset:{VSLOT[slot]-VSLOT[0] + (16*u+8*v)*256}")
        return c

    def newmax(self):
        t0, t1 = V_T, V_T + 1
        c = [f"v_max_f32 v{t0}, v{t0}, v{V_M}", f"v_mov_b32 v{t1}, v{t0}", "s_nop 1", f"v_permlane32_swap_b32 v{t0}, v{t1}",
             f"v_max_f32 v{t0}, v{t0}, v{t1}", f"v_sub_f32 v{t1}, v{V_M}, v{t0}", f"v_mul_f32 v{V_MC}, s{S_C}, v{t0}",
             f"v_mul_f32 v{t1}, s{S_C}, v{t1}", f"v_mov_b32 v{V_M}, v{t0}", f"v_exp_f32 v{V_AL}, v{t1}",
             f"v_add_f32 v{V_MT}, {hex(f2u((self.lazy or 0.0) / CSCALE))}, v{t0}",
             f"v_mul_f32 v{V_L}, v{V_L}, v{V_AL}"]
        c += [f"v_mul_f32 v{V_O+r}, v{V_O+r}, v{V_AL}" for r in range(64)]
        return c

    def softmax(self, n=16, inloop=True):
        c = []
        S = V_S; t0, t1 = V_T, V_T + 1
        c.append(f"v_max3_f32 v{t0}, v{S}, v{S+1}, v{S+2}")
        c.append(f"v_max3_f32 v{t1}, v{S+3}, v{S+4}, v{S+5}")
        i = 6; tog = 0
        while i + 1 < n:
            t = t0 if tog == 0 else t1
            c.append(f"v_max3_f32 v{t}, v{S+i}, v{S+i+1}, v{t}")
            i += 2; tog ^= 1
        c.append(f"v_max_f32 v{t0}, v{t0}, v{t1}")
        if inloop and self.lazy is not None:
            l = self.newlab(); r = self.newlab()
            c.append([f"v_cmp_nle_f32 s[{S_CMP}:{S_CMP+1}], v{t0}, v{V_MT}", "s_nop 0",
                      f"s_cmp_lg_u64 s[{S_CMP}:{S_CMP+1}], 0", f"s_cbranch_scc1 {l}", f"@{r}", f"s_cmp_eq_u32 s{S_BOOST}, 1"])
            self.ool.append([f"@{l}"] + self.newmax() + [f"s_branch {r}"])
        else:
            c += self.newmax()
        for r in range(n):
            c.append(f"v_fma_f32 v{S+r}, v{S+r}, s{S_C}, -v{V_MC}")
        for r in range(n):
            c.append(f"v_exp_f32 v{S+r}, v{S+r}")
        c.append(f"v_add_f32 v{t0}, v{S}, v{S+1}")
        for r in range(0, n, 2):
            c.append(f"v_cvt_pk_bf16_f32 v{V_P+r//2}, v{S+r}, v{S+r+1}")
        tail = [f"v_add_f32 v{t1}, v{S+2}, v{S+3}"]
        for r in range(4, n, 2):
            tail.append(f"v_add_f32 v{t0}, v{t0}, v{S+r}")
            tail.append(f"v_add_f32 v{t1}, v{t1}, v{S+r+1}")
        tail.append(f"v_add_f32 v{V_L}, v{V_L}, v{t0}")
        tail.append(f"v_add_f32 v{V_L}, v{V_L}, v{t1}")
        return c, tail

    def pv(self, nu=2):
        c = []
        for u in range(nu):
            for blk in range(4):
                if nu == 2 and blk % 2 == 0: c.append(f"s_waitcnt lgkmcnt({12 - 8*u - 2*blk})")
                o = vr(V_O + 16 * blk, 16)
                c.append(f"v_mfma_f32_32x32x16_bf16 {o}, {vr(V_VF+(u*4+blk)*4,4)}, {vr(V_P+4*u,4)}, {o}")
        return c

    def tile(self, slot):
        sm, tail = self.softmax()
        c = self.qk(slot) + ["s_nop 7", "s_nop 3"] + sm + ['@vwait'] + self.vreads(slot) + tail + self.pv()
        if self.nocomp: c = ['s_nop 0'] * 12 + ['@vwait'] + ['s_nop 0'] * 4
        self.weave(c, self.loop_loads(slot), lastable=(slot == 1))

    def tree_loads(self):
        A = self.A
        A(f"s_lshl_b32 s{S_T2}, s{S_PAIR}, 12")
        self.mk_srd(SRD_KT, P_KT, 4096, S_T2)
        self.mk_srd(SRD_VT, P_VT, 4096, S_T2)
        A(f"s_lshr_b32 s{S_T2}, s{S_PAIR}, 4")
        A(f"s_lshl_b32 s{S_T2}, s{S_T2}, 9")
        self.mk_srd(SRD_M, P_M, 512, S_T2)
        A(f"s_add_u32 m0, s{S_WBASE}, {KSLOT[1]}")
        A(f"v_and_b32 v{V_T2}, 15, v{V_LANE}")
        for g in range(4):
            A(f"buffer_load_dwordx4 v{V_KVO+g}, {srd(SRD_KT)}, 0 offen offset:{g*1024} lds")
        A(f"s_add_u32 m0, s{S_WBASE}, {VSLOT[1]}")
        A(f"v_lshrrev_b32 v{V_T2+1}, 5, v{V_LANE}")
        for g in range(4):
            A(f"buffer_load_dwordx4 v{V_VVO}, {srd(SRD_VT)}, 0 offen offset:{g*1024} lds")
        A(f"v_lshlrev_b32 v{V_T2}, 5, v{V_T2}")
        A(f"v_lshl_add_u32 v{V_T2}, v{V_T2+1}, 3, v{V_T2}")
        A(f"buffer_load_dwordx2 {vr(V_P,2)}, v{V_T2}, {srd(SRD_M)}, 0 offen")
        A(f"buffer_load_dwordx2 {vr(V_P+2,2)}, v{V_T2}, {srd(SRD_M)}, 0 offen offset:16")

    def tree_compute(self):
        KM = 1e9 * math.sqrt(128.0)
        c = [f"v_mov_b32 v{V_T}, {hex(f2u(KM))}"]
        for j in range(4):
            c.append(f"v_lshlrev_b32 v{V_S+2*j}, 16, v{V_P+j}")
            c.append(f"v_and_b32 v{V_S+2*j+1}, 0xffff0000, v{V_P+j}")
        c += [f"v_fma_f32 v{V_S+r}, v{V_S+r}, v{V_T}, -v{V_T}" for r in range(8)]
        c += [f"v_mov_b32 v{V_S+r}, 0" for r in range(8, 16)]
        c.append("s_waitcnt lgkmcnt(0)")
        sm, tail = self.softmax(8, inloop=False)
        c += self.qk(1, cinit=True) + self.vreads(1, nu=1) + ["s_nop 3"] + sm + tail + ["s_waitcnt lgkmcnt(0)"] + self.pv(nu=1)
        return c

    def payload_loads(self):
        A = self.A
        A(f"buffer_load_dwordx2 {vr(V_PML,2)}, v{V_L8}, {srd(SRD_WS)}, s{S_MLO} offen sc1")
        for j in range(4):
            A(f"buffer_load_dwordx4 {vr(V_PO+4*j,4)}, v{V_L16}, {srd(SRD_WS)}, 0 offen offset:{j*1024} sc1")
        A(f"s_mov_b32 s{S_HAVE}, 1")
    def flag_load(self):
        self.A(f"buffer_load_dword v{V_FL}, off, {srd(SRD_WS)}, s{S_FLAGP} sc1")
    def is_tree(self):
        self.A(f"s_cmp_eq_u32 s{S_OFF0}, {3 << 12}")
    def half_params(self):
        A = self.A
        A(f"s_lshl_b32 s{S_OFF0}, s{S_HALF}, 2")
        A(f"s_add_u32 s{S_OFF0}, s{S_OFF0}, s{S_WAVE}")
        A(f"s_lshl_b32 s{S_OFF0}, s{S_OFF0}, 12")
        A(f"s_add_u32 s{S_OFF1}, s{S_OFF0}, 65536")

    def build(self):
        A = self.A
        D = self.depth
        self.L.append(HEADER + f"; @launch grid=(256,1,1) block=(256,1,1) lds={LDS_TOTAL}")
        self.L += ['.amdgcn_target "amdgcn-amd-amdhsa--gfx950"', ".text", f".globl {self.name}_kernel", ".p2align 8", f".type {self.name}_kernel,@function"]
        self.label(f"{self.name}_kernel")
        A("s_cmp_ge_u32 s2, 256")
        A("s_cbranch_scc1 L_done")
        A("s_load_dwordx16 s[8:23], s[0:1], 8")
        A("s_load_dwordx2 s[4:5], s[0:1], 0")
        self.stamp(0)
        A(f"v_lshrrev_b32 v{V_T}, 6, v0")
        A(f"v_and_b32 v{V_LANE}, 63, v0")
        A(f"v_readfirstlane_b32 s{S_WAVE}, v{V_T}")
        xb = self.xorpair.bit_length() - 1
        A(f"s_lshr_b32 s{S_T0}, s2, {xb+1}")
        A(f"s_lshl_b32 s{S_T0}, s{S_T0}, {xb}")
        A(f"s_and_b32 s{S_PAIR}, s2, {self.xorpair-1}")
        A(f"s_or_b32 s{S_PAIR}, s{S_PAIR}, s{S_T0}")
        A(f"s_bfe_u32 s{S_HALF}, s2, {hex(0x10000 | xb)}")
        row, cp = V_T, V_T + 1
        A(f"v_lshrrev_b32 v{row}, 4, v{V_LANE}")
        A(f"v_and_b32 v{cp}, 15, v{V_LANE}")
        A(f"s_lshl_b32 s{S_WBASE}, s{S_WAVE}, 15")
        A(f"v_xor_b32 v{V_T+2}, v{row}, v{cp}")
        A(f"v_lshlrev_b32 v{V_T+3}, 8, v{row}")
        A(f"v_lshl_add_u32 v{V_KVO}, v{V_T+2}, 4, v{V_T+3}")
        for g in range(1, 4):
            A(f"v_xor_b32 v{V_KVO+g}, {g*64}, v{V_KVO}")
        self.half_params()
        A(f"s_lshl_b32 s{S_T0}, s{S_PAIR}, 21")
        A(f"s_mov_b32 s{SRD_K+2}, {1<<21}")
        A(f"s_mov_b32 s{SRD_K+3}, 0x20000")
        A(f"v_lshlrev_b32 v{V_T+2}, 2, v{row}")
        A(f"v_xor_b32 v{V_T+2}, v{V_T+2}, v{cp}")
        A(f"v_lshl_add_u32 v{V_VVO}, v{V_T+2}, 4, v{V_T+3}")
        A(f"s_lshl_b32 s{S_T2}, s{S_WAVE}, 7")
        A(f"s_and_b32 s{S_T2}, s{S_T2}, 128")
        A(f"v_xor_b32 v{V_T2+2}, s{S_T2}, v{V_KVO}")
        A(f"v_xor_b32 v{V_T2+3}, s{S_T2}, v{V_KVO+1}")
        A(f"s_lshl_b32 s{S_T1}, s{S_PAIR}, 13")
        A("s_waitcnt lgkmcnt(0)")
        if self.st1: self.stamp(3)
        A(f"s_add_u32 s{SRD_K}, s{P_K}, s{S_T0}")
        A(f"s_addc_u32 s{SRD_K+1}, s{P_K+1}, 0")
        A(f"s_and_b32 s{SRD_K+1}, s{SRD_K+1}, 0xffff")
        nfree = D
        for n in range(nfree):
            for x in self.dma('K', n, 0, None): A(x)
        self.mk_srd(SRD_Q, P_Q, 8192, S_T1)
        A(f"s_lshl_b32 s{S_T3}, s{S_WAVE}, 11")
        A(f"s_add_u32 m0, s{S_T3}, {LDS_Q}")
        self.mk_srd(SRD_V, P_V, 1 << 21, S_T0)
        A(f"buffer_load_dwordx4 v{V_T2+2}, {srd(SRD_Q)}, s{S_T3} offen lds")
        A(f"buffer_load_dwordx4 v{V_T2+3}, {srd(SRD_Q)}, s{S_T3} offen offset:1024 lds")
        self.is_tree()
        A("s_cbranch_scc1 L_tree_ld")
        self.label("L_tree_ld_ret")
        A(f"s_lshl_b32 s{S_T2}, s{S_PAIR}, 15")
        self.mk_srd(SRD_WS, P_WS, WS_PAIR, S_T2)
        self.mk_srd(SRD_O, P_O, 8192, S_T1)
        self.mk_srd(SRD_DBG, P_DBG, 256)
        A(f"s_mov_b32 s{S_C}, {hex(f2u(CSCALE))}")
        A(f"s_getreg_b32 s{S_XCC}, hwreg(HW_REG_XCC_ID, 0, 4)")
        for i in range(8):
            A(f"s_add_u32 s{S_M0+i}, s{S_WBASE}, {i*4096}")
        for r_ in (S_HAVE, S_PASS, S_ROLE, S_BOOST):
            A(f"s_mov_b32 s{r_}, 0")
        A(f"s_lshl_b32 s{S_FLAGO}, s{S_HALF}, 10")
        A(f"s_lshl_b32 s{S_T2}, s{S_WAVE}, 2")
        A(f"s_add_u32 s{S_FLAGO}, s{S_FLAGO}, s{S_T2}")
        A(f"s_add_u32 s{S_FLAGO}, s{S_FLAGO}, {WS_FLAG}")
        A(f"s_xor_b32 s{S_FLAGP}, s{S_FLAGO}, 1024")
        A(f"s_lshl_b32 s{S_MLO}, s{S_WAVE}, 9")
        A(f"s_add_u32 s{S_MLO}, s{S_MLO}, 16384")
        r, h = V_T, V_T + 1
        A(f"v_and_b32 v{r}, 31, v{V_LANE}")
        A(f"v_lshrrev_b32 v{h}, 5, v{V_LANE}")
        if self.fb:
            A(f"s_and_b32 s{S_T2}, s2, 7")
            A(f"s_lshl_b32 s{S_T2}, s{S_T2}, 2")
            if not self.common: A(f"s_add_u32 s{S_T2}, s{S_T2}, s{S_WAVE}")
            A(f"s_mul_i32 s{S_T2}, s{S_T2}, 4352")
            A(f"s_add_u32 s{S_T2}, s{S_T2}, {WS_FB}")
            self.mk_srd(SRD_FB, P_WS, 128, S_T2)
            A(f"s_lshr_b32 s{S_T2}, s2, 3")
            A(f"s_lshl_b32 s{S_T2}, s{S_T2}, 2")
            A(f"v_lshlrev_b32 v{V_FBL}, 2, v{r}")
            A(f"v_lshl_add_u32 v{V_FBS}, v{0 if self.common else V_LANE}, 7, s{S_T2}")
            A(f"v_mov_b32 v{V_IDX}, {'s%d' % S_HALF if self.pahead else 0}")
            A(f"s_mov_b32 s{S_THR}, {2*self.thr}")
            A(f"s_bitcmp1_b32 s{S_XCC}, 0")
            A(f"s_mov_b32 s{S_FORCE}, {hex(self.evenmask)}")
            A(f"s_cmov_b32 s{S_FORCE}, {hex(self.oddmask)}")
            if self.cmask:
                A(f"s_mul_i32 s{S_T2}, s{S_HALF}, {hex(self.cmask)}")
                A(f"s_or_b32 s{S_FORCE}, s{S_FORCE}, s{S_T2}")
        A(f"v_and_b32 v{V_T+2}, 15, v{r}")
        A(f"v_xor_b32 v{V_T+2}, v{V_T+2}, v{h}")
        A(f"v_lshlrev_b32 v{V_T+3}, 8, v{r}")
        A(f"v_lshl_add_u32 v{V_T+3}, v{V_T+2}, 4, v{V_T+3}")
        for s in range(8): A(f"v_xor_b32 v{V_KA+s}, {s*32}, v{V_T+3}")
        for s in range(8): A(f"v_add_u32 v{V_KF+s}, {LDS_Q}, v{V_KA+s}")
        for s in range(8): A(f"v_add_u32 v{V_KA+s}, s{S_WBASE}, v{V_KA+s}")
        i4 = V_T + 2
        A(f"v_bfe_u32 v{i4}, v{V_LANE}, 2, 2")
        A(f"v_lshl_add_u32 v{V_T+3}, v{h}, 2, v{i4}")
        A(f"v_lshlrev_b32 v{V_T+3}, 8, v{V_T+3}")
        A(f"v_xor_b32 v{i4}, s{S_WAVE}, v{i4}")
        A(f"v_lshl_add_u32 v{V_T+3}, v{i4}, 6, v{V_T+3}")
        A(f"v_bfe_u32 v{V_T+4}, v{V_LANE}, 4, 1")
        A(f"v_lshl_add_u32 v{V_T+3}, v{V_T+4}, 5, v{V_T+3}")
        A(f"v_and_b32 v{V_T+4}, 3, v{V_LANE}")
        A(f"v_lshl_add_u32 v{V_T+3}, v{V_T+4}, 3, v{V_T+3}")
        for blk in range(4): A(f"v_xor_b32 v{V_VA+blk}, {blk*64}, v{V_T+3}")
        for blk in range(4): A(f"v_add_u32 v{V_VA+blk}, s{S_M0+4}, v{V_VA+blk}")
        A(f"v_mov_b32 v{V_RA}, {LDS_ROLE}")
        A(f"v_mov_b32 v{V_FL}, 0")
        A(f"v_mov_b32 v{V_TK}, 0")
        A(f"ds_write_b32 v{V_RA}, v{V_FL}")
        A(f"v_lshlrev_b32 v{V_L8}, 3, v{V_LANE}")
        A(f"s_lshl_b32 s{S_T2}, s{S_WAVE}, 12")
        A(f"v_lshl_add_u32 v{V_L16}, v{V_LANE}, 4, s{S_T2}")
        A(f"v_mov_b32 v{V_M}, {hex(f2u(-1e30))}")
        A(f"v_mov_b32 v{V_MT}, {hex(f2u(-1e30))}")
        A(f"v_mov_b32 v{V_MC}, {hex(f2u(-1e30 * CSCALE))}")
        A(f"v_mov_b32 v{V_L}, 0")
        extra0 = 2
        if self.fb:
            A(f"buffer_store_dword v{V_IDX}, v{V_FBS}, {srd(SRD_FB)}, 0 offen")
            extra0 = 3
        for r_ in range(64): A(f"v_mov_b32 v{V_O+r_}, 0")
        seq = [('K', n) for n in range(nfree, 8)] + [('V', n) for n in range(8)]
        first_loads = lambda extra: [self.dma(k, n, 0, D - 1 + (extra if i < nfree else 0)) for i, (k, n) in enumerate(seq)]
        nb = nfree + 1
        qreads = [f"ds_read_b128 {vr(V_Q+4*s,4)}, v{V_KF+s}" for s in range(8)]
        if self.st1: self.stamp(4)
        self.is_tree()
        A("s_cbranch_scc1 L_tree")
        fl = first_loads(extra0)
        for i, grp in enumerate(fl[:nb]):
            for x in grp: A(x)
            if self.st1 and i == 0: self.stamp(5)
        A("s_waitcnt lgkmcnt(0)")
        A("s_barrier")
        for x in qreads: A(x)
        for grp in fl[nb:]:
            for x in grp: A(x)
        A("s_waitcnt lgkmcnt(0)")
        A(f"s_cmp_eq_u32 s{S_WAVE}, 0")
        A("s_cbranch_scc0 L_main2")
        A(f"v_lshlrev_b32 v{V_T}, 2, v{V_LANE}")
        A("s_mov_b64 exec, 15")
        A(f"buffer_store_dword v{V_FL}, v{V_T}, {srd(SRD_WS)}, s{S_FLAGO} offen")
        A("s_mov_b64 exec, -1")
        self.label("L_main2")
        self.stamp(1)
        A(f"s_mov_b32 s{S_CNT}, 16")
        A("s_mov_b64 vcc, 0")
        self.label("L_loop")
        if self.st2:
            for i, c in ((3, 15), (4, 14), (5, 13)):
                l = self.newlab()
                A(f"s_cmp_eq_u32 s{S_CNT}, {c}")
                A(f"s_cbranch_scc0 {l}")
                self.stamp(i)
                self.label(l)
        for slot, adv, ck in ((0, 32768, 'A'), (1, 98304, 'B')):
            A(f"s_add_u32 s{S_OFF0}, s{S_OFF0}, {adv}")
            A(f"s_add_u32 s{S_OFF1}, s{S_OFF1}, {adv}")
            A("s_waitcnt vmcnt(8)")
            if self.bar: A("s_barrier")
            A(f"s_cmp_le_u32 s{S_CNT}, 2")
            A(f"s_cbranch_scc1 L_ck{ck}")
            self.label(f"L_ck{ck}_ret")
            if slot == 1: A(f"s_sub_u32 s{S_CNT}, s{S_CNT}, 1")
            A(f"s_cmp_eq_u32 s{S_BOOST}, 1")
            self.tile(slot)
        A("s_cbranch_vccz L_loop")
        self.stamp(2)
        if self.noepi: A("s_branch L_stamps")
        A(f"v_readfirstlane_b32 s{S_T0}, v{V_FL}")
        A(f"v_mov_b32 v{V_T}, v{V_L}")
        A(f"v_mov_b32 v{V_T+1}, v{V_L}")
        A(f"v_lshl_add_u32 v{V_T2}, v{V_LANE}, 4, s{S_WBASE}")
        A(f"v_add_u32 v{V_T2+4}, s{S_WBASE}, v{V_L8}")
        A(f"v_permlane32_swap_b32 v{V_T}, v{V_T+1}")
        A(f"s_cmp_gt_u32 s{S_T0}, s{S_HAVE}")
        A("s_cbranch_scc0 L_noC")
        self.payload_loads()
        self.label("L_noC")
        A(f"s_add_u32 s{S_T0}, s{S_ROLE}, s{S_HAVE}")
        A(f"s_cmp_eq_u32 s{S_T0}, {R_CON}")
        A("s_cbranch_scc0 L_noC2")
        self.flag_load()
        self.label("L_noC2")
        A(f"v_mov_b32 v{V_S}, v{V_M}")
        A(f"v_add_f32 v{V_S+1}, v{V_T}, v{V_T+1}")
        A(f"ds_write_b64 v{V_T2+4}, {vr(V_S,2)} offset:16384")
        for blk in range(1, 4):
            for j in range(4):
                A(f"ds_write_b128 v{V_T2}, {vr(V_O+16*blk+4*j,4)} offset:{blk*4096+j*1024}")
        for j in range(1, 4):
            A(f"s_xor_b32 s{S_T0}, s{S_WBASE}, {j<<15}")
            A(f"v_lshl_add_u32 v{V_T+j}, v{V_LANE}, 4, s{S_T0}")
            A(f"v_add_u32 v{V_T2+j}, s{S_T0}, v{V_L8}")
        A("s_waitcnt lgkmcnt(0)")
        A("s_barrier")
        if not (self.st1 or self.st2): self.stamp(3)
        ML = V_S; F = V_S + 8
        ot = lambda j: (V_KF + 16 * (j - 1)) if j < 3 else V_VF
        A(f"ds_read_b32 v{V_TK}, v{V_RA}")
        for j in range(1, 4):
            A(f"ds_read_b64 {vr(ML+2*j,2)}, v{V_T2+j} offset:16384")
        for j in range(1, 4):
            for i in range(4):
                A(f"ds_read_b128 {vr(ot(j)+4*i,4)}, v{V_T+j} offset:{j*4096 + i*1024}")
        A(f"s_cmp_eq_u32 s{S_HAVE}, 1")
        A("s_cbranch_scc1 L_noD")
        A("s_waitcnt vmcnt(0)")
        A(f"v_readfirstlane_b32 s{S_T0}, v{V_FL}")
        A("s_nop 0")
        A(f"s_cmp_eq_u32 s{S_T0}, 1")
        A("s_cbranch_scc0 L_noD")
        self.payload_loads()
        self.label("L_noD")
        A("s_waitcnt lgkmcnt(12)")
        A(f"v_readfirstlane_b32 s{S_ROLE}, v{V_TK}")
        A(f"v_max3_f32 v{V_AL}, v{ML}, v{ML+2}, v{ML+4}")
        A(f"v_max_f32 v{V_AL}, v{V_AL}, v{ML+6}")
        A(f"s_add_u32 s{S_T0}, s{S_ROLE}, s{S_PASS}")
        A(f"s_cmp_eq_u32 s{S_T0}, {R_SOLO}")
        A("s_cbranch_scc1 L_solo")
        for w in range(4): A(f"v_sub_f32 v{F+w}, v{ML+2*w}, v{V_AL}")
        for w in range(4): A(f"v_mul_f32 v{F+w}, s{S_C}, v{F+w}")
        for w in range(4): A(f"v_exp_f32 v{F+w}, v{F+w}")
        A(f"v_mov_b32 v{V_M}, v{V_AL}")
        A(f"v_mul_f32 v{V_L}, v{F}, v{ML+1}")
        for w in range(1, 4): A(f"v_fmac_f32 v{V_L}, v{F+w}, v{ML+2*w+1}")
        for r_ in range(16): A(f"v_mul_f32 v{V_O+r_}, v{F}, v{V_O+r_}")
        for w in range(1, 4):
            A(f"s_waitcnt lgkmcnt({12-4*w})")
            for r_ in range(16): A(f"v_fmac_f32 v{V_O+r_}, v{F+w}, v{ot(w)+r_}")
        if not (self.st1 or self.st2): self.stamp(4)
        A(f"s_cmp_eq_u32 s{S_HAVE}, 1")
        A("s_cbranch_scc1 L_combine")
        A(f"s_cmp_eq_u32 s{S_ROLE}, {R_PUB}")
        A("s_cbranch_scc0 L_consumer")
        A(f"v_mov_b32 v{V_S}, v{V_M}")
        A(f"v_mov_b32 v{V_S+1}, v{V_L}")
        for j in range(4):
            A(f"buffer_store_dwordx4 {vr(V_O+4*j,4)}, v{V_L16}, {srd(SRD_WS)}, 0 offen offset:{j*1024}")
        A(f"buffer_store_dwordx2 {vr(V_S,2)}, v{V_L8}, {srd(SRD_WS)}, s{S_MLO} offen")
        A(f"v_mov_b32 v{V_T}, 1")
        A("s_mov_b64 exec, 1")
        A("s_waitcnt vmcnt(0)")
        A(f"buffer_store_dword v{V_T}, off, {srd(SRD_WS)}, s{S_FLAGO}")
        A("s_branch L_stamps" if self.stamps else "s_endpgm")
        self.label("L_consumer")
        self.label("L_poll")
        self.flag_load()
        A(f"s_add_u32 s{S_CNT}, s{S_CNT}, 1")
        A(f"s_cmp_gt_u32 s{S_CNT}, 0x100000")
        A("s_cbranch_scc1 L_done")
        A("s_waitcnt vmcnt(0)")
        A(f"v_readfirstlane_b32 s{S_T0}, v{V_FL}")
        A("s_nop 0")
        A(f"s_cmp_eq_u32 s{S_T0}, 1")
        A("s_cbranch_scc0 L_poll")
        self.payload_loads()
        self.label("L_combine")
        A(f"v_and_b32 v{V_T2}, 31, v{V_LANE}")
        A(f"v_lshrrev_b32 v{V_T2+1}, 5, v{V_LANE}")
        A(f"v_lshlrev_b32 v{V_T2}, 8, v{V_T2}")
        A(f"v_lshl_add_u32 v{V_T2}, v{V_T2+1}, 4, v{V_T2}")
        A(f"s_lshl_b32 s{S_T1}, s{S_WAVE}, 6")
        A("s_waitcnt vmcnt(4)")
        A(f"v_max_f32 v{V_T}, v{V_M}, v{V_PML}")
        A(f"v_sub_f32 v{F}, v{V_M}, v{V_T}")
        A(f"v_sub_f32 v{F+1}, v{V_PML}, v{V_T}")
        A(f"v_mul_f32 v{F}, s{S_C}, v{F}")
        A(f"v_mul_f32 v{F+1}, s{S_C}, v{F+1}")
        A(f"v_exp_f32 v{F}, v{F}")
        A(f"v_exp_f32 v{F+1}, v{F+1}")
        A("s_nop 0")
        A(f"v_mul_f32 v{V_L}, v{F}, v{V_L}")
        A(f"v_fmac_f32 v{V_L}, v{F+1}, v{V_PML+1}")
        A(f"v_rcp_f32 v{V_T}, v{V_L}")
        A("s_nop 0")
        A(f"v_mul_f32 v{F}, v{F}, v{V_T}")
        A(f"v_mul_f32 v{F+1}, v{F+1}, v{V_T}")
        for r_ in range(16): A(f"v_mul_f32 v{V_O+r_}, v{F}, v{V_O+r_}")
        A("s_waitcnt vmcnt(0)")
        for r_ in range(16): A(f"v_fmac_f32 v{V_O+r_}, v{F+1}, v{V_PO+r_}")
        for k in range(8): A(f"v_cvt_pk_bf16_f32 v{V_P+k}, v{V_O+2*k}, v{V_O+2*k+1}")
        A("s_nop 1")
        for j in (0, 2):
            A(f"v_permlane32_swap_b32 v{V_P+2*j}, v{V_P+2*j+2}")
            A(f"v_permlane32_swap_b32 v{V_P+2*j+1}, v{V_P+2*j+3}")
        for j in (0, 2):
            A(f"buffer_store_dwordx4 {vr(V_P+2*j,4)}, v{V_T2}, {srd(SRD_O)}, s{S_T1} offen offset:{j*16}")
        if self.stamps:
            self.label("L_stamps")
            A("s_waitcnt vmcnt(0)")
            if not (self.st1 or self.st2): self.stamp(5)
            A("s_mov_b64 exec, 1")
            A(f"s_lshl_b32 s{S_T0}, s{S_XCC}, 8")
            A(f"s_or_b32 s{S_T0}, s{S_T0}, s{S_ROLE}")
            A(f"s_lshl_b32 s{S_T1}, s{S_CNT}, 16")
            A(f"s_or_b32 s{S_T0}, s{S_T0}, s{S_T1}")
            for i in range(6): A(f"v_mov_b32 v{V_S+i}, s{S_STAMP+2*i}")
            A(f"v_mov_b32 v{V_S+6}, s{S_T0}")
            A(f"v_mov_b32 v{V_S+7}, s2")
            A(f"s_lshl_b32 s{S_T0}, s{S_HALF}, 2")
            A(f"s_add_u32 s{S_T0}, s{S_T0}, s{S_WAVE}")
            A(f"s_lshl_b32 s{S_T0}, s{S_T0}, 5")
            A(f"s_add_u32 s{S_T0}, s{S_T0}, 0x7000")
            A(f"buffer_store_dwordx4 {vr(V_S,4)}, off, {srd(SRD_WS)}, s{S_T0}")
            A(f"buffer_store_dwordx4 {vr(V_S+4,4)}, off, {srd(SRD_WS)}, s{S_T0} offset:16")
        self.label("L_done")
        A("s_endpgm")
        for blk in self.ool:
            for x in blk: self.emit(x)
        self.label("L_ckA")
        A(f"s_cmp_eq_u32 s{S_CNT}, 2")
        A("s_cbranch_scc0 L_ckA30")
        A(f"s_or_b32 s{S_T0}, s{S_WAVE}, s{S_PASS}")
        A("s_cbranch_scc1 L_ckA_ret")
        A(f"s_and_b32 s{S_SH}, s{S_PAIR}, 1")
        A(f"s_lshl_b32 s{S_SH}, s{S_SH}, 4")
        A(f"s_lshl_b32 s{S_T1}, s{S_XCC}, 1")
        A(f"s_or_b32 s{S_T1}, s{S_T1}, 1")
        A(f"s_lshl_b32 s{S_T1}, s{S_T1}, s{S_SH}")
        A(f"v_mov_b32 v{V_TK}, s{S_T1}")
        A(f"s_lshr_b32 s{S_T1}, s{S_PAIR}, 1")
        A(f"s_lshl_b32 s{S_T1}, s{S_T1}, 2")
        A("s_mov_b64 exec, 1")
        A(f"buffer_atomic_xor v{V_TK}, off, {srd(SRD_DBG)}, s{S_T1} sc0")
        A("s_mov_b64 exec, -1")
        A("s_branch L_ckA_ret")
        self.label("L_ckA30")
        A(f"ds_read_b32 v{V_T}, v{V_RA}")
        if self.deepc:
            A(f"s_cmp_eq_u32 s{S_HALF}, 1")
            A("s_cselect_b64 vcc, -1, 0")
        else:
            A("s_mov_b64 vcc, -1")
        A("s_waitcnt lgkmcnt(0)")
        A(f"v_readfirstlane_b32 s{S_ROLE}, v{V_T}")
        A("s_nop 0")
        A(f"s_cmp_eq_u32 s{S_ROLE}, {R_CON}")
        A("s_cbranch_scc0 L_ckA_ret")
        self.flag_load()
        A("s_branch L_ckA_ret")
        self.label("L_ckB")
        A(f"s_cmp_eq_u32 s{S_CNT}, 2")
        A("s_cbranch_scc0 L_ckB30")
        A(f"s_or_b32 s{S_T0}, s{S_WAVE}, s{S_PASS}")
        A("s_cbranch_scc1 L_ckB_ret")
        A(f"v_readfirstlane_b32 s{S_T0}, v{V_TK}")
        A("s_nop 0")
        A(f"s_lshr_b32 s{S_T0}, s{S_T0}, s{S_SH}")
        A(f"s_bfe_u32 s{S_T1}, s{S_T0}, 0x40001")
        A(f"s_cmp_eq_u32 s{S_T1}, s{S_XCC}")
        A(f"s_cselect_b32 s{S_T1}, {R_SOLO if self.force_solo else R_CON}, {R_SOLO}")
        A(f"s_bitcmp1_b32 s{S_T0}, 0")
        A(f"s_cselect_b32 s{S_T1}, s{S_T1}, {R_PUB}")
        A(f"v_mov_b32 v{V_T}, s{S_T1}")
        A(f"ds_write_b32 v{V_RA}, v{V_T}")
        A("s_waitcnt lgkmcnt(0)")
        A("s_branch L_ckB_ret")
        self.label("L_ckB30")
        A("s_mov_b64 vcc, -1")
        A(f"v_readfirstlane_b32 s{S_T0}, v{V_FL}")
        A(f"s_cmp_eq_u32 s{S_ROLE}, {R_CON}")
        A("s_cbranch_scc0 L_ckB_ret")
        A(f"s_cmp_eq_u32 s{S_T0}, 1")
        A("s_cbranch_scc1 L_ckB_pay")
        self.flag_load()
        A("s_branch L_ckB_ret")
        self.label("L_ckB_pay")
        self.payload_loads()
        A("s_branch L_ckB_ret")
        self.label("L_tree_ld")
        self.tree_loads()
        A("s_branch L_tree_ld_ret")
        self.label("L_tree")
        fl = first_loads(extra0 + 10)
        for grp in fl[:nb]:
            for x in grp: A(x)
        A("s_waitcnt lgkmcnt(0)")
        A("s_barrier")
        self.weave(qreads + self.tree_compute(), fl[nb:])
        A("s_branch L_main2")
        self.label("L_solo")
        A("s_waitcnt lgkmcnt(0)")
        A(f"s_mov_b32 s{S_PASS}, 1")
        A(f"s_mov_b32 s{S_HAVE}, 1")
        A(f"s_xor_b32 s{S_HALF}, s{S_HALF}, 1")
        A(f"v_mov_b32 v{V_PML}, {hex(f2u(-1e30))}")
        A(f"v_mov_b32 v{V_PML+1}, 0")
        for r_ in range(16): A(f"v_mov_b32 v{V_PO+r_}, 0")
        self.half_params()
        A("s_barrier")
        for k in 'KV':
            for n in range(8):
                for x in self.dma(k, n, 0, None): A(x)
        self.is_tree()
        A("s_cbranch_scc0 L_main2")
        self.tree_loads()
        A("s_waitcnt vmcnt(0)")
        for x in self.tree_compute(): A(x)
        A("s_branch L_main2")
        self.L += ['.section .rodata,"a"', ".p2align 6", f".amdhsa_kernel {self.name}_kernel",
                   f"  .amdhsa_next_free_vgpr {NVGPR}", f"  .amdhsa_next_free_sgpr {NSGPR}", f"  .amdhsa_accum_offset {NVGPR}",
                   "  .amdhsa_group_segment_fixed_size 0", "  .amdhsa_kernarg_size 72", "  .amdhsa_user_sgpr_count 2",
                   "  .amdhsa_user_sgpr_kernarg_segment_ptr 1", "  .amdhsa_system_sgpr_workgroup_id_x 1", ".end_amdhsa_kernel"]
        return "\n".join(self.L) + "\n"

def gen(name=NAME, **kw):
    return Gen(name=name, **kw).build()

def read_stamps(ws):
    import numpy as np
    return ws[:128 * WS_PAIR].view(128, WS_PAIR)[:, 0x7000:0x7100].contiguous().cpu().numpy().view(np.uint32).reshape(128 * 8, 8).astype(np.int64)

def report_stamps(sts):
    import numpy as np
    rows = []; last = []; rows2 = []; rows3 = []
    for a in sts:
        t0 = a[:, 0].min()
        f = lambda x: (x - t0) / 100.0
        role = a[:, 6] & 0xff
        d = lambda m, i, j: (np.median(a[m, i] - a[m, j]) / 100.0) if m.any() else 0.0
        P = role == R_PUB; C = role == R_CON
        polled = C & ((a[:, 6] >> 16) != 0)
        rows.append([f(a[:, 0].max()), np.median(f(a[:, 1])), f(a[:, 1].max()), f(a[:, 2].min()), np.mean(f(a[:, 2])), f(a[:, 2].max()),
                     d(role >= 0, 3, 2), d(role >= 0, 4, 3), d(P, 5, 4), d(C & ~polled, 5, 4), d(polled, 5, 4), polled.sum() / max(1, C.sum()), f(a[:, 5].max())])
        i = a[:, 5].argmax()
        last.append([role[i], polled[i], f(a[i, 2]), f(a[i, 3]), f(a[i, 4]), f(a[i, 5])])
        e = f(a[:, 2]); x = (a[:, 6] >> 8) & 15
        xm = np.array([e[x == j].mean() for j in range(8)]); xmax = np.array([e[x == j].max() for j in range(8)])
        w = e.reshape(128, 2, 4).max(2)
        rows2.append([xm.max() - e.mean(), (xmax - xm).mean(), np.abs(w[:, 0] - w[:, 1]).mean()] + list(xm - e.mean()))
        rows3.append([np.median(a[:, j] - a[:, 0]) / 100.0 for j in (3, 4, 5, 1)])
    m = np.median(np.array(rows), 0)
    print("    start_spread %.2f | main med %.2f max %.2f | loop_end min %.1f mean %.1f max %.1f | ->barrier %.2f merge %.2f pub %.2f cons(pref) %.2f cons(poll) %.2f fracpoll %.2f | end %.2f" % tuple(m))
    print("    xcdmean max-mean %.2f | within-xcd max-mean %.2f | mean |pair diff| %.2f | xcd offsets" % tuple(np.median(np.array(rows2), 0)[:3]), np.round(np.mean(np.array(rows2), 0)[3:], 2))
    hh = np.median(np.array([[((a[:, 2] - a[:, 0].min()) / 100.0).reshape(128, 2, 4)[:, h].mean() for h in (0, 1)] + [((a[:, 2] - a[:, 0].min()) / 100.0).reshape(128, 2, 4)[:, h].max() for h in (0, 1)] for a in sts]), 0)
    print("    loop_end mean half0 %.2f half1 %.2f | max half0 %.2f half1 %.2f" % tuple(hh))
    print("    last wave (role, polled, loop_end, barrier, merged, end):", [tuple(float(y) for y in np.round(x, 1)) for x in last[-4:]])
    print("    st1: kernarg %.2f setup_done %.2f first_data %.2f main %.2f" % tuple(np.median(np.array(rows3), 0)))

if __name__ == '__main__':
    import json
    kw = json.loads(sys.argv[1]) if len(sys.argv) > 1 else {}
    s = gen(**kw)
    if len(sys.argv) > 2: open(sys.argv[2], 'w').write(s)
    else: print(s)
```

```python
import sys, math, struct

NAME = "standalone__tree_speculative_verify_tree_attention_over_candidate_token_tree__sampling"

def f2u(x):
    return struct.unpack('<I', struct.pack('<f', x))[0]

HEADER = """; Kernarg layout for this problem (72 bytes, ptrs only, base s[0:1]):
"""

P_Q, P_K, P_V, P_KT, P_VT, P_M, P_O, P_DBG, P_WS = 4, 8, 10, 12, 14, 16, 18, 20, 22
SRD_S, SRD_FB, SRD_Q, SRD_KT, SRD_VT, SRD_M, SRD_O, SRD_WS, SRD_DBG = 24, 28, 32, 36, 40, 44, 48, 52, 56
S_BOOST, S_CMP = 3, 6
S_WAVE, S_WBASE, S_OFF0, S_OFF1, S_J, S_C, S_PAIR, S_HALF = 60, 61, 62, 63, 64, 65, 66, 67
S_T0, S_T1, S_T2, S_T3 = 68, 69, 70, 71
S_ROLE, S_HAVE, S_PASS, S_XCC, S_FLAGO, S_FLAGP, S_MLO, S_SH = 72, 73, 74, 75, 76, 77, 78, 79
S_STAMP = 80
S_M0 = 92
S_I16, S_LAST, S_ONZ, S_CNT = 96, 97, 98, 99
S_THR, S_FORCE = 100, 101
NSGPR = 102
R_PUB, R_CON, R_SOLO = 1, 2, 3
V_LANE = 1
V_SVO = 2
V_VVO = 6
V_KVO0, V_L, V_MC, V_AL = 7, 8, 9, 10
V_T = 11
V_KA = 16
V_VA = 24
V_TK, V_RA, V_FL, V_L16 = 28, 29, 30, 31
V_Q = 32
V_F = 64
V_S = 96
V_P = 112
V_REF = 120
V_O = 152
V_PO = 216
V_PML = 232
V_L8 = 234
V_T2 = 235
V_MT, V_IDX, V_PRB, V_FBL, V_FBS, V_FT = 240, 241, 242, 243, 244, 245
NARCH = 248

LDS_Q = 131072
LDS_ROLE = LDS_Q + 8192
LDS_TOTAL = LDS_ROLE + 256
WS_PAIR = 32768
WS_FLAG = 0x6000
WS_FB = 128 * WS_PAIR
CSCALE = 128 ** -0.5 * math.log2(math.e)

def vr(a, n=1):
    return f"v{a}" if n == 1 else f"v[{a}:{a+n-1}]"
def srd(a):
    return f"s[{a}:{a+3}]"

class Gen:
    def __init__(self, name=NAME, depth=5, hi=6, stamps=False, noepi=False, xorpair=8, force_solo=False,
                 fb=True, lead=4, thr=16, lazy=8.0, lastdeep=3, evenmask=0, oddmask=0, cmask=0, pahead=False,
                 st1=False, barmid=True, pre=60, warm=0, align=True):
        self.L = []
        self.__dict__.update(locals())
        self.uid = 0
        self.ool = []
    def A(self, s): self.L.append("    " + s)
    def label(self, s): self.L.append(s + ":")
    def emit(self, x):
        if isinstance(x, list):
            for y in x: self.emit(y)
        elif x.startswith('@L_'): self.label(x[1:])
        else: self.A(x)
    def newlab(self):
        self.uid += 1
        return f"L_u{self.uid}"
    def srd_ins(self, d, p, nbytes, off_sgpr=None):
        if off_sgpr is None:
            o = [f"s_mov_b32 s{d}, s{p}", f"s_and_b32 s{d+1}, s{p+1}, 0xffff"]
        else:
            o = [[f"s_add_u32 s{d}, s{p}, s{off_sgpr}", f"s_addc_u32 s{d+1}, s{p+1}, 0"], f"s_and_b32 s{d+1}, s{d+1}, 0xffff"]
        if nbytes is not None:
            o += [f"s_mov_b32 s{d+2}, {nbytes}", f"s_mov_b32 s{d+3}, 0x20000"]
        return o
    def stamp(self, i):
        if self.stamps:
            self.A(f"s_memrealtime s[{S_STAMP+2*i}:{S_STAMP+2*i+1}]")
            if i: self.A("s_waitcnt lgkmcnt(0)")

    def load_ins(self, n):
        return f"buffer_load_dwordx4 v{V_SVO + (n >> 1)}, {srd(SRD_S)}, s{S_OFF1 if n & 1 else S_OFF0} offen offset:{(n >> 1) * 1024} nt lds"
    def adv(self, a):
        return [f"s_add_u32 s{S_OFF0}, s{S_OFF0}, {a}", f"s_add_u32 s{S_OFF1}, s{S_OFF1}, {a}"]
    def first_dma(self, k, wait):
        o = self.adv(32768) if k == 8 else []
        return o + [f"s_add_u32 m0, s{S_WBASE}, {(k >> 3) * 8192 + (k & 1) * 4096}",
                    f"s_waitcnt vmcnt({wait})" if wait is not None else "s_nop 0", self.load_ins(k & 7)]

    def loop_loads(self, phase, hf):
        out = []
        for n in range(8):
            k = hf * 8 + n
            grp = []
            end = self.newlab(); go = self.newlab()
            if phase == 'V': grp.append(f"s_cbranch_vccnz {end}")
            if self.fb and k == 0:
                grp += [f"v_add_u32 v{V_IDX}, 1, v{V_IDX}", f"buffer_load_dword v{V_PRB}, v{V_FBL}, {srd(SRD_FB)}, 0 offen sc1"]
            if self.fb and k == self.lead:
                grp.append(f"buffer_store_dword v{V_IDX}, v{V_FBS}, {srd(SRD_FB)}, 0 offen")
            grp.append(f"s_mov_b32 m0, s{S_M0 + hf * 2 + (n & 1)}")
            cnt = lambda w: sum(1 for p in (0, self.lead) if (k - p) % 16 < w) if self.fb else 0
            if phase == 'V' and hf == 1 and self.lastdeep:
                grp += [f"s_cmp_eq_u32 s{S_BOOST}, 2", f"s_cbranch_scc1 {go}", f"s_cmp_eq_u32 s{S_BOOST}, 1"]
            if self.fb:
                grp += [f"s_waitcnt vmcnt({self.hi - 1 + cnt(self.hi)})", f"s_cbranch_scc1 {go}"]
            grp += [f"s_waitcnt vmcnt({self.depth - 1 + cnt(self.depth)})", f"@{go}", self.load_ins(n), f"@{end}"]
            out.append(grp)
        return out
    def fb_use(self):
        if not self.fb: return []
        return [f"v_sub_u32 v{V_FT}, v{V_PRB}, v{V_IDX}", f"v_cmp_gt_u32 s[{S_CMP}:{S_CMP+1}], 3, v{V_FT}",
                f"s_lshr_b32 s{S_FORCE}, s{S_FORCE}, 1", f"s_and_b32 s{S_T1}, s{S_FORCE}, 1",
                f"s_bcnt1_i32_b64 s{S_T0}, s[{S_CMP}:{S_CMP+1}]", f"s_cmp_ge_u32 s{S_T0}, s{S_THR}",
                f"s_cselect_b32 s{S_BOOST}, 1, s{S_T1}"]

    def cost(self, ins):
        if isinstance(ins, list): return sum(self.cost(i) for i in ins)
        op = ins.split()[0]
        if op.startswith('v_mfma'): return 32
        if op in ('v_exp_f32', 'v_rcp_f32'): return 8
        if op == 's_nop': return 4 * (int(ins.split()[1]) + 1)
        if op.startswith('ds_read'): return 8
        if op.startswith('s_waitcnt'): return 40 if 'lgkm' in ins else 4
        if op.startswith('@'): return 0
        return 4
    def weave(self, comp, loads):
        total = sum(self.cost(i) for i in comp)
        n = len(loads); acc = 0; k = 0
        for ins in comp:
            while k < n and acc >= total * k / n:
                self.emit(loads[k]); k += 1
            self.emit(ins)
            acc += self.cost(ins)
        while k < n:
            self.emit(loads[k]); k += 1

    def qk(self, off, cinit=False):
        c = [f"ds_read_b128 {vr(V_F+4*s,4)}, v{V_KA+s} offset:{off}" for s in range(8)]
        for s in range(8):
            if s % 2 == 0: c.append(f"s_waitcnt lgkmcnt({6-s})")
            cin = vr(V_S, 16) if (s > 0 or cinit) else "0"
            c.append(f"v_mfma_f32_32x32x16_bf16 {vr(V_S,16)}, {vr(V_F+4*s,4)}, {vr(V_Q+4*s,4)}, {cin}")
        return c
    def vreads(self, off, nu=2):
        return [f"ds_read_b64_tr_b16 {vr(V_F + (u*4+blk)*4 + 2*v, 2)}, v{V_VA+blk} offset:{off + (16*u+8*v)*256}"
                for u in range(nu) for blk in range(4) for v in range(2)]
    def pv(self, nu=2):
        c = []
        for u in range(nu):
            for blk in range(4):
                if nu == 2 and blk % 2 == 0: c.append(f"s_waitcnt lgkmcnt({12 - 8*u - 2*blk})")
                o = vr(V_O + 16 * blk, 16)
                c.append(f"v_mfma_f32_32x32x16_bf16 {o}, {vr(V_F+(u*4+blk)*4,4)}, {vr(V_P+4*u,4)}, {o}")
        return c

    def newmax(self):
        t0, t1 = V_T, V_T + 1
        sk = self.newlab()
        c = [f"v_mov_b32 v{t1}, v{t0}", "s_nop 1", f"v_permlane32_swap_b32 v{t0}, v{t1}", f"v_max_f32 v{t0}, v{t0}, v{t1}",
             f"v_mul_f32 v{t0}, s{S_C}, v{t0}", f"v_ceil_f32 v{t0}, v{t0}", f"v_max_f32 v{t0}, v{t0}, v{V_MC}",
             f"v_sub_f32 v{t1}, v{V_MC}, v{t0}", f"v_mov_b32 v{V_MC}, v{t0}", f"v_exp_f32 v{V_AL}, v{t1}",
             f"v_add_f32 v{V_MT}, {hex(f2u(self.lazy))}, v{t0}", f"v_mul_f32 v{V_MT}, {hex(f2u(1.0 / CSCALE))}, v{V_MT}",
             f"v_mul_f32 v{V_L}, v{V_L}, v{V_AL}",
             [f"s_cmp_eq_u32 s{S_ONZ}, 0", f"s_cbranch_scc1 {sk}"] + [f"v_mul_f32 v{V_O+r}, v{V_O+r}, v{V_AL}" for r in range(64)] + [f"@{sk}"]]
        return c
    def softmax(self, n=16, hf=None):
        c = []
        S = V_S; t0, t1 = V_T, V_T + 1
        c.append(f"v_max3_f32 v{t0}, v{S}, v{S+1}, v{S+2}")
        c.append(f"v_max3_f32 v{t1}, v{S+3}, v{S+4}, v{S+5}")
        i = 6; tog = 0
        while i + 1 < n:
            t = t0 if tog == 0 else t1
            c.append(f"v_max3_f32 v{t}, v{S+i}, v{S+i+1}, v{t}")
            i += 2; tog ^= 1
        c.append(f"v_max_f32 v{t0}, v{t0}, v{t1}")
        if hf is not None:
            l = self.newlab(); r = self.newlab()
            c.append([f"v_cmp_nle_f32 vcc, v{t0}, v{V_MT}", "s_nop 0", f"s_cbranch_vccnz {l}", f"@{r}"])
            self.ool.append([f"@{l}"] + self.newmax() + [f"s_add_u32 s{S_LAST}, s{S_J}, {hf}", f"s_cmp_eq_u32 s{S_BOOST}, 1", f"s_branch {r}"])
        else:
            c += self.newmax()
        c += [f"v_fma_f32 v{S+r}, v{S+r}, s{S_C}, -v{V_MC}" for r in range(n)]
        c += [f"v_exp_f32 v{S+r}, v{S+r}" for r in range(n)]
        c.append(f"v_add_f32 v{t0}, v{S}, v{S+1}")
        c += [f"v_cvt_pk_bf16_f32 v{V_P+r//2}, v{S+r}, v{S+r+1}" for r in range(0, n, 2)]
        c.append(f"v_add_f32 v{t1}, v{S+2}, v{S+3}")
        for r in range(4, n, 2):
            c.append(f"v_add_f32 v{t0}, v{t0}, v{S+r}")
            c.append(f"v_add_f32 v{t1}, v{t1}, v{S+r+1}")
        c.append(f"v_add_f32 v{V_L}, v{V_L}, v{t0}")
        c.append(f"v_add_f32 v{V_L}, v{V_L}, v{t1}")
        return c

    def ktile(self, hf):
        keep = [f"s_set_gpr_idx_on s{S_I16}, gpr_idx(DST)", "s_nop 0"]
        keep += [f"v_accvgpr_write_b32 a{8*hf+i}, v{V_P+i}" for i in range(8)]
        keep += [f"s_set_gpr_idx_idx s{S_J}", "s_nop 0", f"v_mov_b32 v{V_REF+hf}, v{V_MC}", "s_set_gpr_idx_off"]
        c = self.qk(hf * 8192) + ["s_nop 7", "s_nop 3"] + self.softmax(16, hf) + [keep]
        if hf == 1: c += [f"v_xor_b32 v{V_KA+s}, 16384, v{V_KA+s}" for s in range(8)]
        self.weave(c, self.loop_loads('K', hf))
    def pfetch(self, hf):
        l = self.newlab(); r = self.newlab()
        c = [f"s_set_gpr_idx_on s{S_I16}, gpr_idx(SRC0)", f"s_add_u32 s{S_T0}, s{S_J}, {hf}"]
        c += [f"v_accvgpr_read_b32 v{V_P+i}, a{8*hf+i}" for i in range(8)]
        c += ["s_set_gpr_idx_off", f"s_cmp_lt_u32 s{S_T0}, s{S_LAST}", f"s_cbranch_scc1 {l}", f"@{r}"]
        fix = [f"@{l}", f"s_set_gpr_idx_on s{S_T0}, gpr_idx(SRC0)", "s_nop 0", f"v_mov_b32 v{V_AL}, v{V_REF}", "s_set_gpr_idx_off",
               f"v_sub_f32 v{V_AL}, v{V_AL}, v{V_MC}", f"v_exp_f32 v{V_AL}, v{V_AL}"]
        for i in range(8):
            fix += [f"v_lshlrev_b32 v{V_T}, 16, v{V_P+i}", f"v_and_b32 v{V_T+1}, 0xffff0000, v{V_P+i}",
                    f"v_mul_f32 v{V_T}, v{V_T}, v{V_AL}", f"v_mul_f32 v{V_T+1}, v{V_T+1}, v{V_AL}",
                    f"v_cvt_pk_bf16_f32 v{V_P+i}, v{V_T}, v{V_T+1}"]
        self.ool.append(fix + [f"s_branch {r}"])
        return c
    def vtile(self, hf):
        c = self.vreads(hf * 8192)
        if hf == 1: c += [f"v_xor_b32 v{V_VA+b}, 16384, v{V_VA+b}" for b in range(4)]
        c += self.pv()
        self.weave(c, self.loop_loads('V', hf))

    def tree_loads(self):
        A = self.A; E = self.emit
        A(f"s_lshl_b32 s{S_T2}, s{S_PAIR}, 12")
        E(self.srd_ins(SRD_KT, P_KT, 4096, S_T2))
        E(self.srd_ins(SRD_VT, P_VT, 4096, S_T2))
        A(f"s_lshr_b32 s{S_T2}, s{S_PAIR}, 4")
        A(f"s_lshl_b32 s{S_T2}, s{S_T2}, 9")
        E(self.srd_ins(SRD_M, P_M, 512, S_T2))
        A(f"s_add_u32 m0, s{S_WBASE}, 16384")
        A(f"v_and_b32 v{V_T2}, 15, v{V_LANE}")
        for g in range(4): A(f"buffer_load_dwordx4 v{V_SVO+g}, {srd(SRD_KT)}, 0 offen offset:{g*1024} lds")
        A(f"s_add_u32 m0, s{S_WBASE}, 24576")
        A(f"v_lshrrev_b32 v{V_T2+1}, 5, v{V_LANE}")
        for g in range(4): A(f"buffer_load_dwordx4 v{V_VVO}, {srd(SRD_VT)}, 0 offen offset:{g*1024} lds")
        A(f"v_lshlrev_b32 v{V_T2}, 5, v{V_T2}")
        A(f"v_lshl_add_u32 v{V_T2}, v{V_T2+1}, 3, v{V_T2}")
        A(f"buffer_load_dwordx2 {vr(V_P,2)}, v{V_T2}, {srd(SRD_M)}, 0 offen")
        A(f"buffer_load_dwordx2 {vr(V_P+2,2)}, v{V_T2}, {srd(SRD_M)}, 0 offen offset:16")
    def tree_compute(self):
        KM = 1e9 * math.sqrt(128.0)
        c = [f"v_mov_b32 v{V_T}, {hex(f2u(KM))}"]
        for j in range(4):
            c += [f"v_lshlrev_b32 v{V_S+2*j}, 16, v{V_P+j}", f"v_and_b32 v{V_S+2*j+1}, 0xffff0000, v{V_P+j}"]
        c += [f"v_fma_f32 v{V_S+r}, v{V_S+r}, v{V_T}, -v{V_T}" for r in range(8)]
        c += [f"v_mov_b32 v{V_S+r}, 0" for r in range(8, 16)]
        c.append("s_waitcnt lgkmcnt(0)")
        c += self.qk(16384, cinit=True) + ["s_nop 3"] + self.vreads(24576, nu=1) + self.softmax(8) + ["s_waitcnt lgkmcnt(0)"] + self.pv(nu=1)
        c.append(f"s_mov_b32 s{S_ONZ}, 1")
        return c

    def payload_loads(self):
        o = [f"buffer_load_dwordx2 {vr(V_PML,2)}, v{V_L8}, {srd(SRD_WS)}, s{S_MLO} offen sc1"]
        o += [f"buffer_load_dwordx4 {vr(V_PO+4*j,4)}, v{V_L16}, {srd(SRD_WS)}, 0 offen offset:{j*1024} sc1" for j in range(4)]
        return o + [f"s_mov_b32 s{S_HAVE}, 1"]
    def flag_load(self):
        return f"buffer_load_dword v{V_FL}, off, {srd(SRD_WS)}, s{S_FLAGP} sc1"
    def try_fetch(self, ret, again=True):
        pay = self.newlab()
        o = [f"v_readfirstlane_b32 s{S_T0}, v{V_FL}", f"s_add_u32 s{S_T1}, s{S_ROLE}, s{S_HAVE}", f"s_cmp_eq_u32 s{S_T1}, {R_CON}",
             f"s_cbranch_scc0 {ret}", f"s_cmp_eq_u32 s{S_T0}, 1"]
        if again: o += [f"s_cbranch_scc1 {pay}", self.flag_load(), f"s_branch {ret}", f"@{pay}"]
        else: o += [f"s_cbranch_scc0 {ret}"]
        return o + self.payload_loads()
    def warm_code(self):
        l = self.newlab()
        return [f"s_getpc_b64 s[{S_CMP}:{S_CMP+1}]", f"@{l}", f"s_lshr_b32 s{S_T2}, s2, 3", f"s_lshl_b32 s{S_T2}, s{S_T2}, 2", f"s_add_u32 s{S_T2}, s{S_T2}, s{S_WAVE}",
                f"s_lshl_b32 s{S_T2}, s{S_T2}, 7", f"s_min_u32 s{S_T2}, s{S_T2}, L_code_end-{self.name}_kernel-4",
                f"s_sub_u32 s{S_CMP}, s{S_CMP}, {l}-{self.name}_kernel", f"s_subb_u32 s{S_CMP+1}, s{S_CMP+1}, 0",
                f"s_add_u32 s{S_CMP}, s{S_CMP}, s{S_T2}", f"s_addc_u32 s{S_CMP+1}, s{S_CMP+1}, 0",
                f"v_mov_b32 v{V_PML}, s{S_CMP}", f"v_mov_b32 v{V_PML+1}, s{S_CMP+1}",
                f"global_load_dword v{V_FT}, {vr(V_PML,2)}, off"]
    def half_params(self):
        return [f"s_lshl_b32 s{S_OFF0}, s{S_HALF}, 2", f"s_add_u32 s{S_OFF0}, s{S_OFF0}, s{S_WAVE}",
                f"s_lshl_b32 s{S_OFF0}, s{S_OFF0}, 12", f"s_add_u32 s{S_OFF1}, s{S_OFF0}, 65536"]
    def is_tree(self):
        self.A(f"s_cmp_eq_u32 s{S_OFF0}, {3 << 12}")

    def build(self):
        A = self.A; E = self.emit
        D = self.depth
        self.L.append(HEADER + f"; @launch grid=(256,1,1) block=(256,1,1) lds={LDS_TOTAL}")
        self.L += ['.amdgcn_target "amdgcn-amd-amdhsa--gfx950"', ".text", f".globl {self.name}_kernel"]
        if self.align: self.L += [".p2align 12", ".fill 832, 4, 0xbf800000"]
        self.L += [".p2align 8", f".type {self.name}_kernel,@function"]
        self.label(f"{self.name}_kernel")
        A("s_cmp_ge_u32 s2, 256")
        A("s_cbranch_scc1 L_done")
        A("s_load_dwordx16 s[8:23], s[0:1], 8")
        A("s_load_dwordx2 s[4:5], s[0:1], 0")
        self.stamp(0)
        A(f"v_lshrrev_b32 v{V_T}, 6, v0")
        A(f"v_and_b32 v{V_LANE}, 63, v0")
        A(f"v_readfirstlane_b32 s{S_WAVE}, v{V_T}")
        xb = self.xorpair.bit_length() - 1
        A(f"s_lshr_b32 s{S_T0}, s2, {xb+1}")
        A(f"s_lshl_b32 s{S_T0}, s{S_T0}, {xb}")
        A(f"s_and_b32 s{S_PAIR}, s2, {self.xorpair-1}")
        A(f"s_or_b32 s{S_PAIR}, s{S_PAIR}, s{S_T0}")
        A(f"s_bfe_u32 s{S_HALF}, s2, {hex(0x10000 | xb)}")
        row, cp = V_T, V_T + 1
        A(f"v_lshrrev_b32 v{row}, 4, v{V_LANE}")
        A(f"v_and_b32 v{cp}, 15, v{V_LANE}")
        A(f"s_lshl_b32 s{S_WBASE}, s{S_WAVE}, 15")
        A(f"v_xor_b32 v{V_T+2}, v{row}, v{cp}")
        A(f"v_lshlrev_b32 v{V_T+3}, 8, v{row}")
        A(f"v_lshl_add_u32 v{V_SVO}, v{V_T+2}, 4, v{V_T+3}")
        for g in range(1, 4): A(f"v_xor_b32 v{V_SVO+g}, {g*64}, v{V_SVO}")
        E(self.half_params())
        A(f"s_lshl_b32 s{S_T0}, s{S_PAIR}, 21")
        A(f"s_mov_b32 s{SRD_S+2}, {1<<21}")
        A(f"s_mov_b32 s{SRD_S+3}, 0x20000")
        A("s_waitcnt lgkmcnt(0)")
        if self.st1: self.stamp(3)
        E(self.srd_ins(SRD_S, P_K, None, S_T0))
        for k in range(D): E(self.first_dma(k, None))
        if self.warm: E(self.warm_code())
        A(f"s_lshl_b32 s{S_T2}, s{S_WAVE}, 7")
        A(f"s_and_b32 s{S_T2}, s{S_T2}, 128")
        A(f"v_xor_b32 v{V_T2+2}, s{S_T2}, v{V_SVO}")
        A(f"v_xor_b32 v{V_T2+3}, s{S_T2}, v{V_SVO+1}")
        A(f"s_lshl_b32 s{S_T1}, s{S_PAIR}, 13")
        A(f"s_lshl_b32 s{S_T3}, s{S_WAVE}, 11")
        A(f"s_add_u32 m0, s{S_T3}, {LDS_Q}")
        E(self.srd_ins(SRD_Q, P_Q, 8192, S_T1))
        A(f"buffer_load_dwordx4 v{V_T2+2}, {srd(SRD_Q)}, s{S_T3} offen lds")
        A(f"buffer_load_dwordx4 v{V_T2+3}, {srd(SRD_Q)}, s{S_T3} offen offset:1024 lds")
        A(f"v_lshlrev_b32 v{V_T+2}, 2, v{row}")
        A(f"v_xor_b32 v{V_T+2}, v{V_T+2}, v{cp}")
        A(f"v_lshl_add_u32 v{V_VVO}, v{V_T+2}, 4, v{V_T+3}")
        self.is_tree()
        A("s_cbranch_scc1 L_tree_ld")
        self.label("L_tree_ld_ret")
        r, h = V_T, V_T + 1
        su = [f"v_and_b32 v{r}, 31, v{V_LANE}", f"v_lshrrev_b32 v{h}, 5, v{V_LANE}"]
        extra0 = 2
        if self.fb:
            su += [f"s_and_b32 s{S_T2}, s2, 7", f"s_mul_i32 s{S_T2}, s{S_T2}, 4352", f"s_add_u32 s{S_T2}, s{S_T2}, {WS_FB}"]
            su += self.srd_ins(SRD_FB, P_WS, 128, S_T2)
            su += [f"s_lshr_b32 s{S_T2}, s2, 3", f"s_lshl_b32 s{S_T2}, s{S_T2}, 2",
                   f"v_lshl_add_u32 v{V_FBS}, v0, 7, s{S_T2}", f"v_mov_b32 v{V_IDX}, {'s%d' % S_HALF if self.pahead else 0}",
                   f"buffer_store_dword v{V_IDX}, v{V_FBS}, {srd(SRD_FB)}, 0 offen", f"v_lshlrev_b32 v{V_FBL}, 2, v{r}"]
            extra0 = 3
        if self.warm: extra0 += 1
        npre_min = len(su)
        su += [f"v_and_b32 v{V_T+2}, 15, v{r}", f"v_xor_b32 v{V_T+2}, v{V_T+2}, v{h}", f"v_lshlrev_b32 v{V_T+3}, 8, v{r}",
               f"v_lshl_add_u32 v{V_T+3}, v{V_T+2}, 4, v{V_T+3}"]
        su += [f"v_xor_b32 v{V_KA+s}, {s*32}, v{V_T+3}" for s in range(8)]
        su += [f"v_add_u32 v{V_F+s}, {LDS_Q}, v{V_KA+s}" for s in range(8)]
        su += [f"v_add_u32 v{V_KA+s}, s{S_WBASE}, v{V_KA+s}" for s in range(8)]
        i4 = V_T + 2
        su += [f"v_bfe_u32 v{i4}, v{V_LANE}, 2, 2", f"v_lshl_add_u32 v{V_T+3}, v{h}, 2, v{i4}", f"v_lshlrev_b32 v{V_T+3}, 8, v{V_T+3}",
               f"v_xor_b32 v{i4}, s{S_WAVE}, v{i4}",
               f"v_lshl_add_u32 v{V_T+3}, v{i4}, 6, v{V_T+3}", f"v_bfe_u32 v{V_T+4}, v{V_LANE}, 4, 1",
               f"v_lshl_add_u32 v{V_T+3}, v{V_T+4}, 5, v{V_T+3}", f"v_and_b32 v{V_T+4}, 3, v{V_LANE}",
               f"v_lshl_add_u32 v{V_T+3}, v{V_T+4}, 3, v{V_T+3}", f"v_add_u32 v{V_VA}, s{S_WBASE}, v{V_T+3}"]
        su += [f"v_xor_b32 v{V_VA+b}, {b*64}, v{V_VA}" for b in range(1, 4)]
        su += [f"s_mov_b32 s{S_C}, {hex(f2u(CSCALE))}", f"s_getreg_b32 s{S_XCC}, hwreg(HW_REG_XCC_ID, 0, 4)"]
        su += [f"s_add_u32 s{S_M0+i}, s{S_WBASE}, {i*4096}" for i in range(4)]
        su += [f"s_mov_b32 s{x}, 0" for x in (S_HAVE, S_PASS, S_BOOST, S_ONZ)]
        su += [f"v_mov_b32 v{V_MT}, {hex(f2u(-1e30))}", f"v_mov_b32 v{V_MC}, {hex(f2u(-1e30))}", f"v_mov_b32 v{V_L}, 0",
               f"v_mov_b32 v{V_KVO0}, v{V_SVO}"]
        su += [f"s_lshl_b32 s{S_T2}, s{S_PAIR}, 15"] + self.srd_ins(SRD_WS, P_WS, WS_PAIR, S_T2)
        su += self.srd_ins(SRD_O, P_O, 8192, S_T1) + self.srd_ins(SRD_DBG, P_DBG, 256)
        su += [f"s_lshl_b32 s{S_FLAGO}, s{S_HALF}, 10", f"s_lshl_b32 s{S_T2}, s{S_WAVE}, 2", f"s_add_u32 s{S_FLAGO}, s{S_FLAGO}, s{S_T2}",
               f"s_add_u32 s{S_FLAGO}, s{S_FLAGO}, {WS_FLAG}", f"s_xor_b32 s{S_FLAGP}, s{S_FLAGO}, 1024",
               f"s_lshl_b32 s{S_MLO}, s{S_WAVE}, 9", f"s_add_u32 s{S_MLO}, s{S_MLO}, 16384",
               f"v_mov_b32 v{V_RA}, {LDS_ROLE}", f"v_mov_b32 v{V_FL}, 0", f"v_mov_b32 v{V_TK}, 0", f"v_lshlrev_b32 v{V_L8}, 3, v{V_LANE}",
               f"s_lshl_b32 s{S_T2}, s{S_WAVE}, 12", f"v_lshl_add_u32 v{V_L16}, v{V_LANE}, 4, s{S_T2}"]
        if self.fb:
            su += [f"s_mov_b32 s{S_THR}, {2*self.thr}", f"s_mov_b32 s{S_FORCE}, {hex(self.evenmask)}",
                   [f"s_bitcmp1_b32 s{S_XCC}, 0", f"s_cmov_b32 s{S_FORCE}, {hex(self.oddmask)}"]]
            if self.cmask:
                su += [f"s_mul_i32 s{S_T2}, s{S_HALF}, {hex(self.cmask)}", f"s_or_b32 s{S_FORCE}, s{S_FORCE}, s{S_T2}"]
        zero_o = [f"v_mov_b32 v{V_O+x}, 0" for x in range(64)]
        npre = max(npre_min, min(self.pre, len(su)))
        E(su[:npre])
        first_loads = lambda extra: [self.first_dma(k, D - 1 + (extra if k < 2 * D else 0)) for k in range(D, 16)]
        nb = D + 1
        qreads = [f"ds_read_b128 {vr(V_Q+4*s,4)}, v{V_F+s}" for s in range(8)]
        if self.st1: self.stamp(4)
        self.is_tree()
        A("s_cbranch_scc1 L_tree")
        fl = first_loads(extra0)
        if self.st1: fl[0] = fl[0] + [f"s_memrealtime s[{S_STAMP+10}:{S_STAMP+11}]", "s_waitcnt lgkmcnt(0)"]
        self.weave(su[npre:], fl[:nb-1])
        E(fl[nb-1])
        A("s_barrier")
        self.weave(qreads + zero_o, fl[nb:])
        A(f"s_cmp_eq_u32 s{S_WAVE}, 0")
        A("s_cbranch_scc0 L_main")
        A(f"v_lshlrev_b32 v{V_T}, 2, v{V_LANE}")
        A("s_mov_b64 exec, 15")
        A(f"buffer_store_dword v{V_FL}, v{V_T}, {srd(SRD_WS)}, s{S_FLAGO} offen")
        A("s_mov_b64 exec, -1")
        self.label("L_main")
        A("s_waitcnt lgkmcnt(0)")
        self.stamp(1)
        for x in (S_J, S_I16, S_LAST): A(f"s_mov_b32 s{x}, 0")
        toggle = [f"s_xor_b32 s{S_M0+i}, s{S_M0+i}, 16384" for i in range(4)]
        self.label("L_kloop")
        E(toggle + self.adv(98304))
        A(f"s_cmp_eq_u32 s{S_J}, 30")
        A("s_cbranch_scc1 L_switch")
        self.label("L_switch_ret")
        A("s_waitcnt vmcnt(8)")
        A("s_barrier")
        A(f"s_cmp_eq_u32 s{S_BOOST}, 1")
        self.ktile(0)
        E(self.adv(32768) + self.fb_use())
        A("s_waitcnt vmcnt(8)")
        if self.barmid: A("s_barrier")
        A(f"s_cmp_eq_u32 s{S_BOOST}, 1")
        self.ktile(1)
        A(f"s_add_u32 s{S_I16}, s{S_I16}, 16")
        A(f"s_add_u32 s{S_J}, s{S_J}, 2")
        A(f"s_cmp_lt_u32 s{S_J}, 32")
        A("s_cbranch_scc1 L_kloop")
        for x in (S_J, S_I16): A(f"s_mov_b32 s{x}, 0")
        A("s_mov_b64 vcc, 0")
        self.label("L_vloop")
        E(toggle + self.adv(98304) + self.pfetch(0))
        A("s_waitcnt vmcnt(8)")
        A("s_barrier")
        A(f"s_cmp_ge_u32 s{S_J}, 26")
        A("s_cbranch_scc1 L_ckA")
        self.label("L_ckA_ret")
        A(f"s_cmp_eq_u32 s{S_BOOST}, 1")
        self.vtile(0)
        E(self.adv(32768) + self.fb_use() + self.pfetch(1))
        A("s_waitcnt vmcnt(8)")
        A(f"s_cmp_ge_u32 s{S_J}, 28")
        A("s_cbranch_scc1 L_ckB")
        if self.barmid: A("s_barrier")
        self.label("L_ckB_ret")
        A(f"s_cmp_eq_u32 s{S_BOOST}, 1")
        self.vtile(1)
        A(f"s_add_u32 s{S_I16}, s{S_I16}, 16")
        A(f"s_add_u32 s{S_J}, s{S_J}, 2")
        A("s_cbranch_vccz L_vloop")
        self.stamp(2)
        A(f"s_mov_b32 s{S_CNT}, 0")
        if self.noepi: A("s_branch L_stamps")
        A(f"s_add_u32 s{S_T0}, s{S_ROLE}, s{S_PASS}")
        A(f"s_cmp_eq_u32 s{S_T0}, {R_SOLO}")
        A("s_cbranch_scc1 L_solo")
        A(f"v_mov_b32 v{V_T}, v{V_L}")
        A(f"v_lshl_add_u32 v{V_T2}, v{V_LANE}, 4, s{S_WBASE}")
        A(f"v_add_u32 v{V_T2+4}, s{S_WBASE}, v{V_L8}")
        A(f"v_permlane32_swap_b32 v{V_T}, v{V_L}")
        A(f"v_mov_b32 v{V_S}, v{V_MC}")
        A(f"v_add_f32 v{V_S+1}, v{V_T}, v{V_L}")
        A(f"ds_write_b64 v{V_T2+4}, {vr(V_S,2)} offset:16384")
        for blk in range(1, 4):
            for j in range(4):
                A(f"ds_write_b128 v{V_T2}, {vr(V_O+16*blk+4*j,4)} offset:{blk*4096+j*1024}")
        for j in range(1, 4):
            A(f"s_xor_b32 s{S_T0}, s{S_WBASE}, {j<<15}")
            A(f"v_lshl_add_u32 v{V_T+j}, v{V_LANE}, 4, s{S_T0}")
            A(f"v_add_u32 v{V_T2+j}, s{S_T0}, v{V_L8}")
        A(f"s_cmp_eq_u32 s{S_HAVE}, 1")
        A("s_cbranch_scc1 L_noC")
        A("s_waitcnt vmcnt(0)")
        E(self.try_fetch("L_noC"))
        self.label("L_noC")
        A("s_waitcnt lgkmcnt(0)")
        A("s_barrier")
        if not self.st1: self.stamp(3)
        ML = V_S; F = V_S + 8
        ot = lambda j: (V_F + 16 * (j - 1)) if j < 3 else V_REF
        for j in range(1, 4): A(f"ds_read_b64 {vr(ML+2*j,2)}, v{V_T2+j} offset:16384")
        for j in range(1, 4):
            for i in range(4): A(f"ds_read_b128 {vr(ot(j)+4*i,4)}, v{V_T+j} offset:{j*4096 + i*1024}")
        A("s_waitcnt lgkmcnt(12)")
        A(f"v_max3_f32 v{V_MC}, v{ML}, v{ML+2}, v{ML+4}")
        A(f"v_max_f32 v{V_MC}, v{V_MC}, v{ML+6}")
        for w in range(4): A(f"v_sub_f32 v{F+w}, v{ML+2*w}, v{V_MC}")
        for w in range(4): A(f"v_exp_f32 v{F+w}, v{F+w}")
        A(f"v_mul_f32 v{V_L}, v{F}, v{ML+1}")
        for w in range(1, 4): A(f"v_fmac_f32 v{V_L}, v{F+w}, v{ML+2*w+1}")
        for r_ in range(16): A(f"v_mul_f32 v{V_O+r_}, v{F}, v{V_O+r_}")
        for w in range(1, 4):
            A(f"s_waitcnt lgkmcnt({12-4*w})")
            for r_ in range(16): A(f"v_fmac_f32 v{V_O+r_}, v{F+w}, v{ot(w)+r_}")
        if not self.st1: self.stamp(4)
        A(f"s_cmp_eq_u32 s{S_HAVE}, 1")
        A("s_cbranch_scc1 L_combine")
        A(f"s_cmp_eq_u32 s{S_ROLE}, {R_PUB}")
        A("s_cbranch_scc0 L_poll_chk")
        A(f"v_mov_b32 v{V_S}, v{V_MC}")
        A(f"v_mov_b32 v{V_S+1}, v{V_L}")
        for j in range(4): A(f"buffer_store_dwordx4 {vr(V_O+4*j,4)}, v{V_L16}, {srd(SRD_WS)}, 0 offen offset:{j*1024}")
        A(f"buffer_store_dwordx2 {vr(V_S,2)}, v{V_L8}, {srd(SRD_WS)}, s{S_MLO} offen")
        A(f"v_mov_b32 v{V_T}, 1")
        A("s_mov_b64 exec, 1")
        A("s_waitcnt vmcnt(0)")
        A(f"buffer_store_dword v{V_T}, off, {srd(SRD_WS)}, s{S_FLAGO}")
        A("s_branch L_stamps" if self.stamps else "s_endpgm")
        self.label("L_poll")
        A(self.flag_load())
        self.label("L_poll_chk")
        A(f"s_add_u32 s{S_CNT}, s{S_CNT}, 1")
        A(f"s_cmp_gt_u32 s{S_CNT}, 0x100000")
        A("s_cbranch_scc1 L_done")
        A("s_waitcnt vmcnt(0)")
        A(f"v_readfirstlane_b32 s{S_T0}, v{V_FL}")
        A("s_nop 0")
        A(f"s_cmp_eq_u32 s{S_T0}, 1")
        A("s_cbranch_scc0 L_poll")
        E(self.payload_loads())
        self.label("L_combine")
        A(f"v_and_b32 v{V_T2}, 31, v{V_LANE}")
        A(f"v_lshrrev_b32 v{V_T2+1}, 5, v{V_LANE}")
        A(f"v_lshlrev_b32 v{V_T2}, 8, v{V_T2}")
        A(f"v_lshl_add_u32 v{V_T2}, v{V_T2+1}, 4, v{V_T2}")
        A(f"s_lshl_b32 s{S_T1}, s{S_WAVE}, 6")
        A("s_waitcnt vmcnt(4)")
        A(f"v_max_f32 v{V_T}, v{V_MC}, v{V_PML}")
        A(f"v_sub_f32 v{F}, v{V_MC}, v{V_T}")
        A(f"v_sub_f32 v{F+1}, v{V_PML}, v{V_T}")
        A(f"v_exp_f32 v{F}, v{F}")
        A(f"v_exp_f32 v{F+1}, v{F+1}")
        A(f"v_mul_f32 v{V_L}, v{F}, v{V_L}")
        A(f"v_fmac_f32 v{V_L}, v{F+1}, v{V_PML+1}")
        A(f"v_rcp_f32 v{V_T}, v{V_L}")
        A("s_nop 0")
        A(f"v_mul_f32 v{F}, v{F}, v{V_T}")
        A(f"v_mul_f32 v{F+1}, v{F+1}, v{V_T}")
        for r_ in range(16): A(f"v_mul_f32 v{V_O+r_}, v{F}, v{V_O+r_}")
        A("s_waitcnt vmcnt(0)")
        for r_ in range(16): A(f"v_fmac_f32 v{V_O+r_}, v{F+1}, v{V_PO+r_}")
        for k in range(8): A(f"v_cvt_pk_bf16_f32 v{V_P+k}, v{V_O+2*k}, v{V_O+2*k+1}")
        A("s_nop 1")
        for j in (0, 2):
            A(f"v_permlane32_swap_b32 v{V_P+2*j}, v{V_P+2*j+2}")
            A(f"v_permlane32_swap_b32 v{V_P+2*j+1}, v{V_P+2*j+3}")
        for j in (0, 2): A(f"buffer_store_dwordx4 {vr(V_P+2*j,4)}, v{V_T2}, {srd(SRD_O)}, s{S_T1} offen offset:{j*16}")
        if self.stamps:
            self.label("L_stamps")
            A("s_waitcnt vmcnt(0)")
            if not self.st1: self.stamp(5)
            A("s_mov_b64 exec, 1")
            A(f"s_lshl_b32 s{S_T0}, s{S_XCC}, 8")
            A(f"s_or_b32 s{S_T0}, s{S_T0}, s{S_ROLE}")
            A(f"s_lshl_b32 s{S_T1}, s{S_CNT}, 16")
            A(f"s_or_b32 s{S_T0}, s{S_T0}, s{S_T1}")
            for i in range(6): A(f"v_mov_b32 v{V_S+i}, s{S_STAMP+2*i}")
            A(f"v_mov_b32 v{V_S+6}, s{S_T0}")
            A(f"v_mov_b32 v{V_S+7}, s2")
            A(f"s_lshl_b32 s{S_T0}, s{S_HALF}, 2")
            A(f"s_add_u32 s{S_T0}, s{S_T0}, s{S_WAVE}")
            A(f"s_lshl_b32 s{S_T0}, s{S_T0}, 5")
            A(f"s_add_u32 s{S_T0}, s{S_T0}, 0x7000")
            A(f"buffer_store_dwordx4 {vr(V_S,4)}, off, {srd(SRD_WS)}, s{S_T0}")
            A(f"buffer_store_dwordx4 {vr(V_S+4,4)}, off, {srd(SRD_WS)}, s{S_T0} offset:16")
        self.label("L_done")
        A("s_endpgm")
        self.label("L_switch")
        A(f"s_lshl_b32 s{S_T0}, s{S_PAIR}, 21")
        E(self.srd_ins(SRD_S, P_V, None, S_T0))
        E(self.half_params())
        for g in range(4): A(f"v_mov_b32 v{V_SVO+g}, v{V_VVO}")
        if self.warm == 2:
            A(f"s_cmp_eq_u32 s{S_PASS}, 0")
            A("s_cbranch_scc0 L_switch_ret")
            A(f"global_load_dword v{V_T2}, {vr(V_PML,2)}, off")
        A("s_branch L_switch_ret")
        self.label("L_ckA")
        A(f"s_cmp_eq_u32 s{S_J}, 30")
        A("s_cbranch_scc1 L_ckA30")
        A(f"s_or_b32 s{S_T0}, s{S_WAVE}, s{S_PASS}")
        A("s_cbranch_scc1 L_ckA_ret")
        A(f"s_cmp_eq_u32 s{S_J}, 28")
        A("s_cbranch_scc1 L_ckA28")
        A(f"s_and_b32 s{S_SH}, s{S_PAIR}, 1")
        A(f"s_lshl_b32 s{S_SH}, s{S_SH}, 4")
        A(f"s_lshl_b32 s{S_T1}, s{S_XCC}, 1")
        A(f"s_or_b32 s{S_T1}, s{S_T1}, 1")
        A(f"s_lshl_b32 s{S_T1}, s{S_T1}, s{S_SH}")
        A(f"v_mov_b32 v{V_TK}, s{S_T1}")
        A(f"s_lshr_b32 s{S_T1}, s{S_PAIR}, 1")
        A(f"s_lshl_b32 s{S_T1}, s{S_T1}, 2")
        A("s_mov_b64 exec, 1")
        A(f"buffer_atomic_xor v{V_TK}, off, {srd(SRD_DBG)}, s{S_T1} sc0")
        A("s_mov_b64 exec, -1")
        A("s_branch L_ckA_ret")
        self.label("L_ckA28")
        A(f"v_readfirstlane_b32 s{S_T0}, v{V_TK}")
        A("s_nop 0")
        A(f"s_lshr_b32 s{S_T0}, s{S_T0}, s{S_SH}")
        A(f"s_bfe_u32 s{S_T1}, s{S_T0}, 0x40001")
        A(f"s_cmp_eq_u32 s{S_T1}, s{S_XCC}")
        A(f"s_cselect_b32 s{S_T1}, {R_SOLO if self.force_solo else R_CON}, {R_SOLO}")
        A(f"s_bitcmp1_b32 s{S_T0}, 0")
        A(f"s_cselect_b32 s{S_T1}, s{S_T1}, {R_PUB}")
        A(f"v_mov_b32 v{V_T}, s{S_T1}")
        A(f"ds_write_b32 v{V_RA}, v{V_T}")
        A("s_waitcnt lgkmcnt(0)")
        A("s_branch L_ckA_ret")
        self.label("L_ckA30")
        A("s_mov_b64 vcc, -1")
        E(self.try_fetch("L_ckA_ret"))
        A("s_branch L_ckA_ret")
        self.label("L_ckB")
        A("s_cbranch_vccnz L_ckB30")
        A("s_barrier")
        A(f"ds_read_b32 v{V_T}, v{V_RA}")
        if self.lastdeep:
            A(f"s_lshr_b32 s{S_T0}, {self.lastdeep}, s{S_HALF}")
            A(f"s_bitcmp1_b32 s{S_T0}, 0")
            A(f"s_cmov_b32 s{S_BOOST}, 2")
        A("s_waitcnt lgkmcnt(0)")
        A(f"v_readfirstlane_b32 s{S_ROLE}, v{V_T}")
        A("s_nop 0")
        A(f"s_cmp_eq_u32 s{S_ROLE}, {R_CON}")
        A("s_cbranch_scc0 L_ckB_ret")
        A(self.flag_load())
        A("s_branch L_ckB_ret")
        self.label("L_ckB30")
        A("s_waitcnt vmcnt(0)")
        E(self.try_fetch("L_ckB_ret"))
        A("s_branch L_ckB_ret")
        for blk in self.ool: E(blk)
        self.ool = []
        self.label("L_tree_ld")
        self.tree_loads()
        A("s_branch L_tree_ld_ret")
        self.label("L_tree")
        fl = first_loads(extra0 + 10)
        self.weave(su[npre:] + zero_o, fl[:nb-1])
        E(fl[nb-1])
        A("s_barrier")
        self.weave(qreads + self.tree_compute(), fl[nb:])
        A("s_branch L_main")
        self.label("L_solo")
        for x in (S_PASS, S_HAVE, S_ONZ): A(f"s_mov_b32 s{x}, 1")
        A(f"s_mov_b32 s{S_BOOST}, 0")
        A(f"s_xor_b32 s{S_HALF}, s{S_HALF}, 1")
        A(f"v_mov_b32 v{V_PML}, {hex(f2u(-1e30))}")
        A(f"v_mov_b32 v{V_PML+1}, 0")
        for r_ in range(16): A(f"v_mov_b32 v{V_PO+r_}, 0")
        A(f"s_lshl_b32 s{S_T0}, s{S_PAIR}, 21")
        E(self.srd_ins(SRD_S, P_K, None, S_T0))
        E(self.half_params())
        for g in range(4): A(f"v_xor_b32 v{V_SVO+g}, {g*64}, v{V_KVO0}")
        self.is_tree()
        A("s_cbranch_scc0 L_solo2")
        self.tree_loads()
        A("s_waitcnt vmcnt(0)")
        E(self.tree_compute())
        self.label("L_solo2")
        for k in range(16): E(self.first_dma(k, None))
        A("s_branch L_main")
        self.label("L_code_end")
        self.L += ['.section .rodata,"a"', ".p2align 6", f".amdhsa_kernel {self.name}_kernel",
                   f"  .amdhsa_next_free_vgpr {NARCH + 256}", f"  .amdhsa_next_free_sgpr {NSGPR}", f"  .amdhsa_accum_offset {NARCH}",
                   "  .amdhsa_group_segment_fixed_size 0", "  .amdhsa_kernarg_size 72", "  .amdhsa_user_sgpr_count 2",
                   "  .amdhsa_user_sgpr_kernarg_segment_ptr 1", "  .amdhsa_system_sgpr_workgroup_id_x 1", ".end_amdhsa_kernel"]
        return "\n".join(self.L) + "\n"

def gen(name=NAME, **kw):
    return Gen(name=name, **kw).build()

from gen5 import read_stamps, report_stamps

if __name__ == '__main__':
    import json
    kw = json.loads(sys.argv[1]) if len(sys.argv) > 1 else {}
    s = gen(**kw)
    if len(sys.argv) > 2: open(sys.argv[2], 'w').write(s)
    else: print(s)
```

```python
import sys, math, struct

NAME = "standalone__tree_speculative_verify_tree_attention_over_candidate_token_tree__sampling"

def f2u(x):
    return struct.unpack('<I', struct.pack('<f', x))[0]

HEADER = """; Kernarg layout for this problem (72 bytes, ptrs only, base s[0:1]):
"""

P_Q, P_K, P_V, P_KT, P_VT, P_M, P_O, P_DBG, P_WS = 4, 8, 10, 12, 14, 16, 18, 20, 22
SRD_S, SRD_FB, SRD_Q, SRD_KT, SRD_VT, SRD_M, SRD_O, SRD_WS, SRD_DBG = 24, 28, 32, 36, 40, 44, 48, 52, 56
S_BOOST, S_CMP = 3, 6
S_WAVE, S_WBASE, S_OFF0, S_OFF1, S_J, S_C, S_PAIR, S_HALF = 60, 61, 62, 63, 64, 65, 66, 67
S_T0, S_T1, S_T2, S_T3 = 68, 69, 70, 71
S_ROLE, S_HAVE, S_PASS, S_XCC, S_FLAGO, S_FLAGP, S_MLO, S_SH = 72, 73, 74, 75, 76, 77, 78, 79
S_STAMP = 80
S_M0 = 92
S_I16, S_CNT = 96, 99
S_THR, S_FORCE = 100, 101
NSGPR = 102
R_PUB, R_CON, R_SOLO = 1, 2, 3
V_LANE = 1
V_SVO = 2
V_VVO = 6
V_KVO0, V_L, V_MC, V_AL = 7, 8, 9, 10
V_T = 11
V_KA = 16
V_VA = 24
V_PA, V_PW = 26, 27
V_TK, V_RA, V_FL, V_L16 = 28, 29, 30, 31
V_Q = 32
V_F = 64
V_S = 96
V_P = 112
V_REF = 120
V_O = 200
V_PF = 168
V_TP = 152
V_TREF, V_MG, V_LG, V_K = 156, 157, 158, 159
V_ST = 160
V_PO = 216
V_PML = 232
V_L8 = 234
V_T2 = 235
V_MT, V_IDX, V_PRB, V_FBL, V_FBS, V_FT = 240, 241, 242, 243, 244, 245
NARCH = 248

LDS_Q = 131072
LDS_PX = LDS_Q
LDS_TV = LDS_PX + 16384
LDS_TP = LDS_TV + 4096
LDS_ST = LDS_TP + 1024
LDS_ROLE = LDS_ST + 2048
LDS_TOTAL = LDS_ROLE + 256
WS_PAIR = 32768
WS_FLAG = 0x6000
WS_FB = 128 * WS_PAIR
CSCALE = 128 ** -0.5 * math.log2(math.e)

def vr(a, n=1):
    return f"v{a}" if n == 1 else f"v[{a}:{a+n-1}]"
def srd(a):
    return f"s[{a}:{a+3}]"

class Gen:
    def __init__(self, name=NAME, depth=5, hi=6, stamps=False, noepi=False, xorpair=8, force_solo=False,
                 fb=True, lead=4, thr=16, lazy=8.0, lastdeep=3, evenmask=0, oddmask=0, cmask=0, pahead=False,
                 st1=False, barmid=True, pre=200, warm=1, align=True, per=16, palate=False, basek='0'*16, basev='0'*16, oflags='', pay16=False, pflags='', late=None):
        self.L = []
        self.__dict__.update(locals())
        self.uid = 0
        self.ool = []
    def A(self, s): self.L.append("    " + s)
    def label(self, s): self.L.append(s + ":")
    def emit(self, x):
        if isinstance(x, list):
            for y in x: self.emit(y)
        elif x.startswith('@L_'): self.label(x[1:])
        else: self.A(x)
    def newlab(self):
        self.uid += 1
        return f"L_u{self.uid}"
    def srd_ins(self, d, p, nbytes, off_sgpr=None):
        if off_sgpr is None:
            o = [f"s_mov_b32 s{d}, s{p}", f"s_and_b32 s{d+1}, s{p+1}, 0xffff"]
        else:
            o = [[f"s_add_u32 s{d}, s{p}, s{off_sgpr}", f"s_addc_u32 s{d+1}, s{p+1}, 0"], f"s_and_b32 s{d+1}, s{d+1}, 0xffff"]
        if nbytes is not None:
            o += [f"s_mov_b32 s{d+2}, {nbytes}", f"s_mov_b32 s{d+3}, 0x20000"]
        return o
    def stamp(self, i):
        if self.stamps:
            self.A(f"s_memrealtime s[{S_STAMP+2*i}:{S_STAMP+2*i+1}]")
            if i: self.A("s_waitcnt lgkmcnt(0)")

    def load_ins(self, n):
        return f"buffer_load_dwordx4 v{V_SVO + (n >> 1)}, {srd(SRD_S)}, s{S_OFF1 if n & 1 else S_OFF0} offen offset:{(n >> 1) * 1024} nt lds"
    def adv(self, a):
        return [f"s_add_u32 s{S_OFF0}, s{S_OFF0}, {a}", f"s_add_u32 s{S_OFF1}, s{S_OFF1}, {a}"]
    def first_dma(self, k, wait):
        o = self.adv(32768) if k == 8 else []
        return o + [f"s_add_u32 m0, s{S_WBASE}, {(k >> 3) * 8192 + (k & 1) * 4096}",
                    f"s_waitcnt vmcnt({wait})" if wait is not None else "s_nop 0", self.load_ins(k & 7)]

    def loop_loads(self, phase, hf):
        out = []
        per = self.per
        for n in range(8):
            k = (hf * 8 + n) % per
            grp = []
            end = self.newlab(); go = self.newlab()
            if phase == 'V': grp.append(f"s_cbranch_vccnz {end}")
            if self.fb and k == 0:
                grp += [f"v_add_u32 v{V_IDX}, 1, v{V_IDX}", f"buffer_load_dword v{V_PRB}, v{V_FBL}, {srd(SRD_FB)}, 0 offen sc1"]
            if self.fb and k == self.lead:
                grp.append(f"buffer_store_dword v{V_IDX}, v{V_FBS}, {srd(SRD_FB)}, 0 offen")
            grp.append(f"s_mov_b32 m0, s{S_M0 + hf * 2 + (n & 1)}")
            cnt = lambda w: sum(1 for p in (0, self.lead) if (k - p) % per < w) if self.fb else 0
            if phase == 'V' and hf == 1 and self.lastdeep:
                grp += [f"s_cmp_eq_u32 s{S_BOOST}, 2", f"s_cbranch_scc1 {go}", f"s_cmp_eq_u32 s{S_BOOST}, 1"]
            bs = int((self.basek if phase == 'K' else self.basev)[hf * 8 + n])
            if self.fb:
                grp += [f"s_waitcnt vmcnt({self.hi + bs - 1 + cnt(self.hi + bs)})", f"s_cbranch_scc1 {go}"]
            grp += [f"s_waitcnt vmcnt({self.depth + bs - 1 + cnt(self.depth + bs)})", f"@{go}", self.load_ins(n), f"@{end}"]
            out.append(grp)
        return out
    def fb_use(self, hf):
        if not self.fb or (self.per == 16 and hf == 0): return []
        o = ["s_waitcnt vmcnt(9)", f"v_sub_u32 v{V_FT}, v{V_PRB}, v{V_IDX}", f"v_cmp_gt_u32 s[{S_CMP}:{S_CMP+1}], {3 if self.per == 16 else 5}, v{V_FT}"]
        o += [f"s_lshr_b32 s{S_FORCE}, s{S_FORCE}, 1" if hf == 1 else "s_nop 0"]
        o += [f"s_and_b32 s{S_T1}, s{S_FORCE}, 1", f"s_bcnt1_i32_b64 s{S_T0}, s[{S_CMP}:{S_CMP+1}]", f"s_cmp_ge_u32 s{S_T0}, s{S_THR}",
              f"s_cselect_b32 s{S_BOOST}, 1, s{S_T1}"]
        return o

    def cost(self, ins):
        if isinstance(ins, list): return sum(self.cost(i) for i in ins)
        op = ins.split()[0]
        if op.startswith('v_mfma'): return 32
        if op in ('v_exp_f32', 'v_rcp_f32'): return 8
        if op == 's_nop': return 4 * (int(ins.split()[1]) + 1)
        if op.startswith('ds_read'): return 8
        if op.startswith('s_waitcnt'): return (40 if ins.endswith('(6)') or ins.endswith('(12)') else 10) if 'lgkm' in ins else 4
        if op.startswith('@'): return 0
        return 4
    def weave(self, comp, loads):
        total = sum(self.cost(i) for i in comp)
        n = len(loads); acc = 0; k = 0
        for ins in comp:
            while k < n and acc >= total * k / n:
                self.emit(loads[k]); k += 1
            self.emit(ins)
            acc += self.cost(ins)
        while k < n:
            self.emit(loads[k]); k += 1

    def qk(self, off, cinit=False):
        c = [f"ds_read_b128 {vr(V_F+4*s,4)}, v{V_KA+s} offset:{off}" for s in range(8)]
        for s in range(8):
            if s % 2 == 0: c.append(f"s_waitcnt lgkmcnt({6-s})")
            cin = vr(V_S, 16) if (s > 0 or cinit) else "0"
            c.append(f"v_mfma_f32_32x32x16_bf16 {vr(V_S,16)}, {vr(V_F+4*s,4)}, {vr(V_Q+4*s,4)}, {cin}")
        return c

    def newmax(self):
        t0, t1 = V_T, V_T + 1
        c = [f"v_mov_b32 v{t1}, v{t0}", "s_nop 1", f"v_permlane32_swap_b32 v{t0}, v{t1}", f"v_max_f32 v{t0}, v{t0}, v{t1}",
             f"v_mul_f32 v{t0}, s{S_C}, v{t0}", f"v_ceil_f32 v{t0}, v{t0}", f"v_max_f32 v{t0}, v{t0}, v{V_MC}",
             f"v_sub_f32 v{t1}, v{V_MC}, v{t0}", f"v_mov_b32 v{V_MC}, v{t0}", f"v_exp_f32 v{V_AL}, v{t1}",
             f"v_add_f32 v{V_MT}, {hex(f2u(self.lazy))}, v{t0}", f"v_mul_f32 v{V_MT}, {hex(f2u(1.0 / CSCALE))}, v{V_MT}",
             f"v_mul_f32 v{V_L}, v{V_L}, v{V_AL}"]
        return c
    def softmax(self, n=16, hf=None):
        c = []
        S = V_S; t0, t1 = V_T, V_T + 1
        c.append(f"v_max3_f32 v{t0}, v{S}, v{S+1}, v{S+2}")
        c.append(f"v_max3_f32 v{t1}, v{S+3}, v{S+4}, v{S+5}")
        i = 6; tog = 0
        while i + 1 < n:
            t = t0 if tog == 0 else t1
            c.append(f"v_max3_f32 v{t}, v{S+i}, v{S+i+1}, v{t}")
            i += 2; tog ^= 1
        c.append(f"v_max_f32 v{t0}, v{t0}, v{t1}")
        if hf is not None:
            l = self.newlab(); r = self.newlab()
            c.append([f"v_cmp_nle_f32 vcc, v{t0}, v{V_MT}", "s_nop 0", f"s_cbranch_vccnz {l}", f"@{r}"])
            self.ool.append([f"@{l}"] + self.newmax() + [f"s_branch {r}"])
        else:
            c += self.newmax()
        c += [f"v_fma_f32 v{S+r}, v{S+r}, s{S_C}, -v{V_MC}" for r in range(n)]
        c += [f"v_exp_f32 v{S+r}, v{S+r}" for r in range(n)]
        c.append(f"v_add_f32 v{t0}, v{S}, v{S+1}")
        c += [f"v_cvt_pk_bf16_f32 v{V_P+r//2}, v{S+r}, v{S+r+1}" for r in range(0, n, 2)]
        c.append(f"v_add_f32 v{t1}, v{S+2}, v{S+3}")
        for r in range(4, n, 2):
            c.append(f"v_add_f32 v{t0}, v{t0}, v{S+r}")
            c.append(f"v_add_f32 v{t1}, v{t1}, v{S+r+1}")
        c.append(f"v_add_f32 v{V_L}, v{V_L}, v{t0}")
        c.append(f"v_add_f32 v{V_L}, v{V_L}, v{t1}")
        return c

    def ktile(self, hf):
        keep = [f"s_set_gpr_idx_on s{S_I16}, gpr_idx(DST)", "s_nop 0"]
        keep += [f"v_accvgpr_write_b32 a{8*hf+i}, v{V_P+i}" for i in range(8)]
        keep += [f"s_set_gpr_idx_idx s{S_J}", "s_nop 0", f"v_mov_b32 v{V_REF+hf}, v{V_MC}", "s_set_gpr_idx_off"]
        c = self.qk(hf * 8192) + ["s_nop 7", "s_nop 3"] + self.softmax(16, hf) + [keep]
        if hf == 1: c += [f"v_xor_b32 v{V_KA+s}, 16384, v{V_KA+s}" for s in range(8)]
        self.weave(c, self.loop_loads('K', hf))
    def pscale(self, ref, regs):
        c = [f"v_sub_f32 v{V_K}, v{V_MG}, v{ref}", f"v_min_f32 v{V_K}, 0x437f0000, v{V_K}", f"v_cvt_u32_f32 v{V_K}, v{V_K}",
             f"v_mul_u32_u24 v{V_K}, 0x800080, v{V_K}"]
        return c + [f"v_pk_sub_u16 v{r}, v{r}, v{V_K} clamp" for r in regs]
    def pfetch(self, d):
        g = [f"s_set_gpr_idx_on s{S_I16}, gpr_idx(SRC0)", "s_nop 0"]
        g += [f"v_accvgpr_read_b32 v{V_P+i}, a{8*d+i}" for i in range(8)]
        g += [f"s_set_gpr_idx_idx s{S_J}", "s_nop 0", f"v_mov_b32 v{V_AL}, v{V_REF+d}", "s_set_gpr_idx_off"]
        return [g] + self.pscale(V_AL, range(V_P, V_P + 8))
    def pwrite(self, b):
        return [f"ds_write_b128 v{V_PW}, {vr(V_P+4*u,4)} offset:{b*8192 + u*1024}" for u in range(2)]
    def vtile(self, hf):
        def reads(m):
            w, u = m >> 1, m & 1
            return [f"ds_read_b128 {vr(V_PF+4*m,4)}, v{V_PA} offset:{hf*8192 + w*2048 + u*1024}"] + \
                   [f"ds_read_b64_tr_b16 {vr(V_F+4*m+2*v,2)}, v{V_VA+(w>>1)} offset:{(w&1)*32768 + hf*8192 + (16*u+8*v)*256}" for v in range(2)]
        c = []
        for m in range(5): c += reads(m)
        fetch = self.pfetch(hf + 1)
        rest = fetch[1:]
        if hf == 1: rest = rest + [f"v_xor_b32 v{V_VA+b}, 16384, v{V_VA+b}" for b in range(2)]
        o = vr(V_O, 16)
        for m in range(8):
            c.append(f"s_waitcnt lgkmcnt({min(12, 21 - 3*m)})")
            c.append(f"v_mfma_f32_32x32x16_bf16 {o}, {vr(V_F+4*m,4)}, {vr(V_PF+4*m,4)}, {o}")
            if m < 3: c += reads(m + 5)
            elif m == 3: c.append(fetch[0])
            elif m < 7: c += rest[5*(m-4):5*(m-4)+5]
        c += self.pwrite(hf ^ 1)
        self.weave(c, self.loop_loads('V', hf))

    def tree_loads(self):
        A = self.A; E = self.emit
        A(f"s_lshl_b32 s{S_T2}, s{S_PAIR}, 12")
        E(self.srd_ins(SRD_KT, P_KT, 4096, S_T2))
        E(self.srd_ins(SRD_VT, P_VT, 4096, S_T2))
        A(f"s_lshr_b32 s{S_T2}, s{S_PAIR}, 4")
        A(f"s_lshl_b32 s{S_T2}, s{S_T2}, 9")
        E(self.srd_ins(SRD_M, P_M, 512, S_T2))
        A(f"s_add_u32 m0, s{S_WBASE}, 16384")
        A(f"v_and_b32 v{V_T2}, 15, v{V_LANE}")
        for g in range(4): A(f"buffer_load_dwordx4 v{V_SVO+g}, {srd(SRD_KT)}, 0 offen offset:{g*1024} lds")
        A(f"s_mov_b32 m0, {LDS_TV}")
        A(f"v_lshrrev_b32 v{V_T2+1}, 5, v{V_LANE}")
        for g in range(4): A(f"buffer_load_dwordx4 v{V_VVO}, {srd(SRD_VT)}, 0 offen offset:{g*1024} lds")
        A(f"v_lshlrev_b32 v{V_T2}, 5, v{V_T2}")
        A(f"v_lshl_add_u32 v{V_T2}, v{V_T2+1}, 3, v{V_T2}")
        A(f"buffer_load_dwordx2 {vr(V_P,2)}, v{V_T2}, {srd(SRD_M)}, 0 offen")
        A(f"buffer_load_dwordx2 {vr(V_P+2,2)}, v{V_T2}, {srd(SRD_M)}, 0 offen offset:16")
    def tree_compute(self):
        KM = 1e9 * math.sqrt(128.0)
        c = [f"v_mov_b32 v{V_T}, {hex(f2u(KM))}"]
        for j in range(4):
            c += [f"v_lshlrev_b32 v{V_S+2*j}, 16, v{V_P+j}", f"v_and_b32 v{V_S+2*j+1}, 0xffff0000, v{V_P+j}"]
        c += [f"v_fma_f32 v{V_S+r}, v{V_S+r}, v{V_T}, -v{V_T}" for r in range(8)]
        c += [f"v_mov_b32 v{V_S+r}, 0" for r in range(8, 16)]
        c.append("s_waitcnt lgkmcnt(0)")
        c += self.qk(16384, cinit=True) + ["s_nop 7", "s_nop 3"] + self.softmax(8)
        c += [f"v_mov_b32 v{V_TP+i}, v{V_P+i}" for i in range(4)] + [f"v_mov_b32 v{V_TREF}, v{V_MC}"]
        return c

    def payload_loads(self):
        o = [f"buffer_load_dwordx2 {vr(V_PML,2)}, v{V_L8}, {srd(SRD_WS)}, s{S_MLO} offen sc1"]
        o += [f"buffer_load_dwordx4 {vr(V_PO+4*j,4)}, v{V_L16}, {srd(SRD_WS)}, 0 offen offset:{j*1024} sc1" for j in range(2 if self.pay16 else 4)]
        return o + [f"s_mov_b32 s{S_HAVE}, 1"]
    def flag_load(self):
        return f"buffer_load_dword v{V_FL}, off, {srd(SRD_WS)}, s{S_FLAGP} sc1"
    def try_fetch(self, ret, again=True):
        pay = self.newlab()
        o = [f"v_readfirstlane_b32 s{S_T0}, v{V_FL}", f"s_add_u32 s{S_T1}, s{S_ROLE}, s{S_HAVE}", f"s_cmp_eq_u32 s{S_T1}, {R_CON}",
             f"s_cbranch_scc0 {ret}", f"s_cmp_eq_u32 s{S_T0}, 1"]
        if again: o += [f"s_cbranch_scc1 {pay}", self.flag_load(), f"s_branch {ret}", f"@{pay}"]
        else: o += [f"s_cbranch_scc0 {ret}"]
        return o + self.payload_loads()
    def warm_code(self):
        l = self.newlab()
        return [f"s_getpc_b64 s[{S_CMP}:{S_CMP+1}]", f"@{l}", f"s_lshr_b32 s{S_T2}, s2, 3", f"s_lshl_b32 s{S_T2}, s{S_T2}, 2", f"s_add_u32 s{S_T2}, s{S_T2}, s{S_WAVE}",
                f"s_lshl_b32 s{S_T2}, s{S_T2}, 7", f"s_min_u32 s{S_T2}, s{S_T2}, L_code_end-{self.name}_kernel-4",
                f"s_sub_u32 s{S_CMP}, s{S_CMP}, {l}-{self.name}_kernel", f"s_subb_u32 s{S_CMP+1}, s{S_CMP+1}, 0",
                f"s_add_u32 s{S_CMP}, s{S_CMP}, s{S_T2}", f"s_addc_u32 s{S_CMP+1}, s{S_CMP+1}, 0",
                f"v_mov_b32 v{V_PML}, s{S_CMP}", f"v_mov_b32 v{V_PML+1}, s{S_CMP+1}",
                f"global_load_dword v{V_FT}, {vr(V_PML,2)}, off"]
    def half_params(self):
        return [f"s_lshl_b32 s{S_OFF0}, s{S_HALF}, 2", f"s_add_u32 s{S_OFF0}, s{S_OFF0}, s{S_WAVE}",
                f"s_lshl_b32 s{S_OFF0}, s{S_OFF0}, 12", f"s_add_u32 s{S_OFF1}, s{S_OFF0}, 65536"]
    def is_tree(self):
        self.A(f"s_cmp_eq_u32 s{S_OFF0}, {3 << 12}")

    def build(self):
        A = self.A; E = self.emit
        D = self.depth
        self.L.append(HEADER + f"; @launch grid=(256,1,1) block=(256,1,1) lds={LDS_TOTAL}")
        self.L += ['.amdgcn_target "amdgcn-amd-amdhsa--gfx950"', ".text", f".globl {self.name}_kernel"]
        if self.align: self.L += [".p2align 12", ".fill 832, 4, 0xbf800000"]
        self.L += [".p2align 8", f".type {self.name}_kernel,@function"]
        self.label(f"{self.name}_kernel")
        A("s_cmp_ge_u32 s2, 256")
        A("s_cbranch_scc1 L_done")
        A("s_load_dwordx16 s[8:23], s[0:1], 8")
        A("s_load_dwordx2 s[4:5], s[0:1], 0")
        self.stamp(0)
        A(f"v_lshrrev_b32 v{V_T}, 6, v0")
        A(f"v_and_b32 v{V_LANE}, 63, v0")
        A(f"v_readfirstlane_b32 s{S_WAVE}, v{V_T}")
        xb = self.xorpair.bit_length() - 1
        A(f"s_lshr_b32 s{S_T0}, s2, {xb+1}")
        A(f"s_lshl_b32 s{S_T0}, s{S_T0}, {xb}")
        A(f"s_and_b32 s{S_PAIR}, s2, {self.xorpair-1}")
        A(f"s_or_b32 s{S_PAIR}, s{S_PAIR}, s{S_T0}")
        A(f"s_bfe_u32 s{S_HALF}, s2, {hex(0x10000 | xb)}")
        row, cp = V_T, V_T + 1
        A(f"v_lshrrev_b32 v{row}, 4, v{V_LANE}")
        A(f"v_and_b32 v{cp}, 15, v{V_LANE}")
        A(f"s_lshl_b32 s{S_WBASE}, s{S_WAVE}, 15")
        A(f"v_xor_b32 v{V_T+2}, v{row}, v{cp}")
        A(f"v_lshlrev_b32 v{V_T+3}, 8, v{row}")
        A(f"v_lshl_add_u32 v{V_SVO}, v{V_T+2}, 4, v{V_T+3}")
        for g in range(1, 4): A(f"v_xor_b32 v{V_SVO+g}, {g*64}, v{V_SVO}")
        E(self.half_params())
        A(f"s_lshl_b32 s{S_T0}, s{S_PAIR}, 21")
        A(f"s_mov_b32 s{SRD_S+2}, {1<<21}")
        A(f"s_mov_b32 s{SRD_S+3}, 0x20000")
        A("s_waitcnt lgkmcnt(0)")
        if self.st1: self.stamp(3)
        E(self.srd_ins(SRD_S, P_K, None, S_T0))
        for k in range(D): E(self.first_dma(k, None))
        if self.warm: E(self.warm_code())
        A(f"s_lshl_b32 s{S_T2}, s{S_WAVE}, 7")
        A(f"s_and_b32 s{S_T2}, s{S_T2}, 128")
        A(f"v_xor_b32 v{V_T2+2}, s{S_T2}, v{V_SVO}")
        A(f"v_xor_b32 v{V_T2+3}, s{S_T2}, v{V_SVO+1}")
        A(f"s_lshl_b32 s{S_T1}, s{S_PAIR}, 13")
        A(f"s_lshl_b32 s{S_T3}, s{S_WAVE}, 11")
        A(f"s_add_u32 m0, s{S_T3}, {LDS_Q}")
        E(self.srd_ins(SRD_Q, P_Q, 8192, S_T1))
        A(f"buffer_load_dwordx4 v{V_T2+2}, {srd(SRD_Q)}, s{S_T3} offen lds")
        A(f"buffer_load_dwordx4 v{V_T2+3}, {srd(SRD_Q)}, s{S_T3} offen offset:1024 lds")
        A(f"v_lshlrev_b32 v{V_T+2}, 2, v{row}")
        A(f"v_xor_b32 v{V_T+2}, v{V_T+2}, v{cp}")
        A(f"v_lshl_add_u32 v{V_VVO}, v{V_T+2}, 4, v{V_T+3}")
        self.is_tree()
        A("s_cbranch_scc1 L_tree_ld")
        self.label("L_tree_ld_ret")
        r, h = V_T, V_T + 1
        su = [f"v_and_b32 v{r}, 31, v{V_LANE}", f"v_lshrrev_b32 v{h}, 5, v{V_LANE}"]
        extra0 = 2
        if self.fb:
            su += [f"s_and_b32 s{S_T2}, s2, 7", f"s_mul_i32 s{S_T2}, s{S_T2}, 4352", f"s_add_u32 s{S_T2}, s{S_T2}, {WS_FB}"]
            su += self.srd_ins(SRD_FB, P_WS, 128, S_T2)
            su += [f"s_lshr_b32 s{S_T2}, s2, 3", f"s_lshl_b32 s{S_T2}, s{S_T2}, 2",
                   f"v_lshl_add_u32 v{V_FBS}, v0, 7, s{S_T2}", f"v_mov_b32 v{V_IDX}, {'s%d' % S_HALF if self.pahead and not self.palate else 0}",
                   f"buffer_store_dword v{V_IDX}, v{V_FBS}, {srd(SRD_FB)}, 0 offen", f"v_lshlrev_b32 v{V_FBL}, 2, v{r}"]
            extra0 = 3
        if self.warm: extra0 += 1
        npre_min = len(su)
        su += [f"v_and_b32 v{V_T+2}, 15, v{r}", f"v_xor_b32 v{V_T+2}, v{V_T+2}, v{h}", f"v_lshlrev_b32 v{V_T+3}, 8, v{r}",
               f"v_lshl_add_u32 v{V_T+3}, v{V_T+2}, 4, v{V_T+3}"]
        su += [f"v_xor_b32 v{V_KA+s}, {s*32}, v{V_T+3}" for s in range(8)]
        su += [f"v_add_u32 v{V_F+s}, {LDS_Q}, v{V_KA+s}" for s in range(8)]
        su += [f"v_add_u32 v{V_KA+s}, s{S_WBASE}, v{V_KA+s}" for s in range(8)]
        i4 = V_T + 2
        su += [f"v_bfe_u32 v{i4}, v{V_LANE}, 2, 2", f"v_lshl_add_u32 v{V_T+3}, v{h}, 2, v{i4}", f"v_lshlrev_b32 v{V_T+3}, 8, v{V_T+3}",
               f"v_xor_b32 v{i4}, s{S_WAVE}, v{i4}",
               f"v_lshl_add_u32 v{V_T+3}, v{i4}, 6, v{V_T+3}", f"v_bfe_u32 v{V_T+4}, v{V_LANE}, 4, 1",
               f"v_lshl_add_u32 v{V_T+3}, v{V_T+4}, 5, v{V_T+3}", f"v_and_b32 v{V_T+4}, 3, v{V_LANE}",
               f"v_lshl_add_u32 v{V_VA}, v{V_T+4}, 3, v{V_T+3}", f"v_add_u32 v{V_VA+1}, 0x10000, v{V_VA}",
               f"v_lshlrev_b32 v{V_PA}, 4, v{V_LANE}", f"v_add_u32 v{V_PA}, {LDS_PX}, v{V_PA}", f"v_add_u32 v{V_PW}, s{S_T3}, v{V_PA}",
               f"v_mov_b32 v{V_MG}, {hex(f2u(-1e30))}", f"v_mov_b32 v{V_PRB}, 0x7fffffff"]
        su += [f"s_mov_b32 s{S_C}, {hex(f2u(CSCALE))}", f"s_getreg_b32 s{S_XCC}, hwreg(HW_REG_XCC_ID, 0, 4)"]
        su += [f"s_add_u32 s{S_M0+i}, s{S_WBASE}, {i*4096}" for i in range(4)]
        su += [f"s_mov_b32 s{x}, 0" for x in (S_HAVE, S_PASS, S_BOOST)]
        su += [f"v_mov_b32 v{V_MT}, {hex(f2u(-1e30))}", f"v_mov_b32 v{V_MC}, {hex(f2u(-1e30))}", f"v_mov_b32 v{V_L}, 0",
               f"v_mov_b32 v{V_KVO0}, v{V_SVO}"]
        su += [f"s_lshl_b32 s{S_T2}, s{S_PAIR}, 15"] + self.srd_ins(SRD_WS, P_WS, WS_PAIR, S_T2)
        su += self.srd_ins(SRD_O, P_O, 8192, S_T1) + self.srd_ins(SRD_DBG, P_DBG, 256)
        su += [f"s_lshl_b32 s{S_FLAGO}, s{S_HALF}, 10", f"s_lshl_b32 s{S_T2}, s{S_WAVE}, 2", f"s_add_u32 s{S_FLAGO}, s{S_FLAGO}, s{S_T2}",
               f"s_add_u32 s{S_FLAGO}, s{S_FLAGO}, {WS_FLAG}", f"s_xor_b32 s{S_FLAGP}, s{S_FLAGO}, 1024",
               f"s_lshl_b32 s{S_MLO}, s{S_WAVE}, 9", f"s_add_u32 s{S_MLO}, s{S_MLO}, 16384",
               f"v_mov_b32 v{V_RA}, {LDS_ROLE}", f"v_mov_b32 v{V_FL}, 0", f"v_mov_b32 v{V_TK}, 0", f"v_lshlrev_b32 v{V_L8}, 3, v{V_LANE}",
               f"s_lshl_b32 s{S_T2}, s{S_WAVE}, 12", f"v_lshl_add_u32 v{V_L16}, v{V_LANE}, 4, s{S_T2}"]
        if self.fb:
            su += [f"s_mov_b32 s{S_THR}, {2*self.thr}", f"s_mov_b32 s{S_FORCE}, {hex(self.evenmask)}",
                   [f"s_bitcmp1_b32 s{S_XCC}, 0", f"s_cmov_b32 s{S_FORCE}, {hex(self.oddmask)}"]]
            if self.cmask:
                su += [f"s_mul_i32 s{S_T2}, s{S_HALF}, {hex(self.cmask)}", f"s_or_b32 s{S_FORCE}, s{S_FORCE}, s{S_T2}"]
        zero_o = [f"v_mov_b32 v{V_O+x}, 0" for x in range(16)]
        npre = max(npre_min, min(self.pre, len(su)))
        E(su[:npre])
        first_loads = lambda extra: [self.first_dma(k, D - 1 + (extra if k < 2 * D else 0)) for k in range(D, 16)]
        nb = D + 1
        qreads = [f"ds_read_b128 {vr(V_Q+4*s,4)}, v{V_F+s}" for s in range(8)]
        if self.st1: self.stamp(4)
        self.is_tree()
        A("s_cbranch_scc1 L_tree")
        fl = first_loads(extra0)
        if self.st1: fl[0] = fl[0] + [f"s_memrealtime s[{S_STAMP+10}:{S_STAMP+11}]", "s_waitcnt lgkmcnt(0)"]
        self.weave(su[npre:], fl[:nb-1])
        E(fl[nb-1])
        A("s_barrier")
        self.weave(qreads + zero_o, fl[nb:])
        A(f"s_cmp_eq_u32 s{S_WAVE}, 0")
        A("s_cbranch_scc0 L_main")
        A(f"v_lshlrev_b32 v{V_T}, 2, v{V_LANE}")
        A("s_mov_b64 exec, 15")
        A(f"buffer_store_dword v{V_FL}, v{V_T}, {srd(SRD_WS)}, s{S_FLAGO} offen")
        A("s_mov_b64 exec, -1")
        self.label("L_main")
        A("s_waitcnt lgkmcnt(0)")
        self.stamp(1)
        for x in (S_J, S_I16): A(f"s_mov_b32 s{x}, 0")
        toggle = [f"s_xor_b32 s{S_M0+i}, s{S_M0+i}, 16384" for i in range(4)]
        self.label("L_kloop")
        E(toggle + self.adv(98304) + self.fb_use(0))
        A(f"s_cmp_eq_u32 s{S_J}, 30")
        A("s_cbranch_scc1 L_switch")
        self.label("L_switch_ret")
        A("s_waitcnt vmcnt(8)")
        A("s_barrier")
        A(f"s_cmp_eq_u32 s{S_BOOST}, 1")
        self.ktile(0)
        E(self.adv(32768) + self.fb_use(1))
        A("s_waitcnt vmcnt(8)")
        if self.barmid: A("s_barrier")
        A(f"s_cmp_eq_u32 s{S_BOOST}, 1")
        self.ktile(1)
        A(f"s_add_u32 s{S_I16}, s{S_I16}, 16")
        A(f"s_add_u32 s{S_J}, s{S_J}, 2")
        A(f"s_cmp_lt_u32 s{S_J}, 32")
        A("s_cbranch_scc1 L_kloop")
        A(f"v_mov_b32 v{V_T}, v{V_L}")
        A(f"v_mov_b32 v{V_T+1}, v{V_L}")
        A(f"v_add_u32 v{V_T2}, {LDS_ST}, v{V_L8}")
        A(f"s_lshl_b32 s{S_T0}, s{S_WAVE}, 9")
        A(f"v_permlane32_swap_b32 v{V_T}, v{V_T+1}")
        A(f"v_add_u32 v{V_T2+1}, s{S_T0}, v{V_T2}")
        A(f"v_mov_b32 v{V_S}, v{V_MC}")
        A(f"v_add_f32 v{V_S+1}, v{V_T}, v{V_T+1}")
        A(f"ds_write_b64 v{V_T2+1}, {vr(V_S,2)}")
        for x in (S_J, S_I16): A(f"s_mov_b32 s{x}, 0")
        A("s_mov_b64 vcc, 0")
        fetch = self.pfetch(0)
        E(fetch[0])
        A("s_waitcnt lgkmcnt(0)")
        A("s_barrier")
        for w in range(4): A(f"ds_read_b64 {vr(V_ST+2*w,2)}, v{V_T2} offset:{w*512}")
        A(f"v_mov_b32 v{V_T}, v{V_MG}")
        if self.pahead and self.palate:
            A(f"s_xor_b32 s{S_T0}, s{S_HALF}, 1")
            A(f"v_subrev_u32 v{V_IDX}, s{S_T0}, v{V_IDX}")
        A("s_waitcnt lgkmcnt(0)")
        A(f"v_max3_f32 v{V_MG}, v{V_ST}, v{V_ST+2}, v{V_ST+4}")
        A(f"v_max_f32 v{V_MG}, v{V_MG}, v{V_ST+6}")
        E(fetch[1:] + self.pwrite(0))
        A(f"s_lshl_b32 s{S_T0}, s{S_HALF}, 2")
        A(f"s_add_u32 s{S_T0}, s{S_T0}, s{S_WAVE}")
        A(f"s_cmp_eq_u32 s{S_T0}, 3")
        A("s_cbranch_scc1 L_treep")
        self.label("L_treep_ret")
        F = V_S + 8
        for w in range(4): A(f"v_sub_f32 v{F+w}, v{V_ST+2*w}, v{V_MG}")
        A(f"v_sub_f32 v{V_T}, v{V_T}, v{V_MG}")
        for w in range(4): A(f"v_exp_f32 v{F+w}, v{F+w}")
        A(f"v_exp_f32 v{V_T}, v{V_T}")
        A(f"v_mul_f32 v{V_LG}, v{F}, v{V_ST+1}")
        for w in range(1, 4): A(f"v_fmac_f32 v{V_LG}, v{F+w}, v{V_ST+2*w+1}")
        for r_ in range(16): A(f"v_mul_f32 v{V_O+r_}, v{V_T}, v{V_O+r_}")
        self.label("L_vloop")
        E(toggle + self.adv(98304) + self.fb_use(0))
        A(f"s_sub_u32 s{S_T0}, s{S_J}, 2")
        A("s_waitcnt vmcnt(8) lgkmcnt(0)")
        A("s_barrier")
        A(f"s_cmp_ge_u32 s{S_T0}, 24")
        A("s_cbranch_scc1 L_ckA")
        self.label("L_ckA_ret")
        A(f"s_cmp_eq_u32 s{S_BOOST}, 1")
        self.vtile(0)
        E(self.adv(32768) + self.fb_use(1))
        A(f"s_cmp_ge_u32 s{S_J}, 28")
        A("s_waitcnt vmcnt(8) lgkmcnt(0)")
        A("s_cbranch_scc1 L_ckB")
        A("s_barrier")
        self.label("L_ckB_ret")
        A(f"s_cmp_eq_u32 s{S_BOOST}, 1")
        self.vtile(1)
        A(f"s_add_u32 s{S_I16}, s{S_I16}, 16")
        A(f"s_add_u32 s{S_J}, s{S_J}, 2")
        A("s_cbranch_vccz L_vloop")
        self.stamp(2)
        if not self.st1 and self.stamps:
            for i in (3, 4): A(f"s_mov_b32 s{S_STAMP+2*i}, s{S_STAMP+4}")
        A(f"s_mov_b32 s{S_CNT}, 0")
        if self.noepi: A("s_branch L_stamps")
        A(f"s_cmp_eq_u32 s{S_HAVE}, 1")
        A("s_cbranch_scc1 L_combine")
        A(f"s_cmp_eq_u32 s{S_ROLE}, {R_CON}")
        A("s_cbranch_scc1 L_poll_chk")
        A(f"s_cmp_eq_u32 s{S_ROLE}, {R_SOLO}")
        A("s_cbranch_scc1 L_solo")
        A(f"v_mov_b32 v{V_S}, v{V_MG}")
        A(f"v_mov_b32 v{V_S+1}, v{V_LG}")
        A(f"buffer_store_dwordx2 {vr(V_S,2)}, v{V_L8}, {srd(SRD_WS)}, s{S_MLO} offen")
        if self.pay16:
            for k in range(8): A(f"v_cvt_pk_bf16_f32 v{V_P+k}, v{V_O+2*k}, v{V_O+2*k+1}")
            for j in range(2): A(f"buffer_store_dwordx4 {vr(V_P+4*j,4)}, v{V_L16}, {srd(SRD_WS)}, 0 offen offset:{j*1024} {self.pflags}")
        else:
            for j in range(4): A(f"buffer_store_dwordx4 {vr(V_O+4*j,4)}, v{V_L16}, {srd(SRD_WS)}, 0 offen offset:{j*1024} {self.pflags}")
        A(f"v_mov_b32 v{V_T}, 1")
        A("s_mov_b64 exec, 1")
        A("s_waitcnt vmcnt(0)")
        A(f"buffer_store_dword v{V_T}, off, {srd(SRD_WS)}, s{S_FLAGO}")
        A("s_branch L_stamps" if self.stamps else "s_endpgm")
        self.label("L_poll")
        A(self.flag_load())
        self.label("L_poll_chk")
        A(f"s_add_u32 s{S_CNT}, s{S_CNT}, 1")
        A(f"s_cmp_gt_u32 s{S_CNT}, 0x100000")
        A("s_cbranch_scc1 L_done")
        A("s_waitcnt vmcnt(0)")
        A(f"v_readfirstlane_b32 s{S_T0}, v{V_FL}")
        A("s_nop 0")
        A(f"s_cmp_eq_u32 s{S_T0}, 1")
        A("s_cbranch_scc0 L_poll")
        E(self.payload_loads())
        self.label("L_combine")
        A(f"v_and_b32 v{V_T2}, 31, v{V_LANE}")
        A(f"v_lshrrev_b32 v{V_T2+1}, 5, v{V_LANE}")
        A(f"v_lshlrev_b32 v{V_T2}, 8, v{V_T2}")
        A(f"v_lshl_add_u32 v{V_T2}, v{V_T2+1}, 4, v{V_T2}")
        A(f"s_lshl_b32 s{S_T1}, s{S_WAVE}, 6")
        A(f"s_waitcnt vmcnt({2 if self.pay16 else 4})")
        A(f"v_max_f32 v{V_T}, v{V_MG}, v{V_PML}")
        A(f"v_sub_f32 v{F}, v{V_MG}, v{V_T}")
        A(f"v_sub_f32 v{F+1}, v{V_PML}, v{V_T}")
        A(f"v_exp_f32 v{F}, v{F}")
        A(f"v_exp_f32 v{F+1}, v{F+1}")
        A(f"v_mul_f32 v{V_L}, v{F}, v{V_LG}")
        A(f"v_fmac_f32 v{V_L}, v{F+1}, v{V_PML+1}")
        A(f"v_rcp_f32 v{V_T}, v{V_L}")
        A("s_nop 0")
        A(f"v_mul_f32 v{F}, v{F}, v{V_T}")
        A(f"v_mul_f32 v{F+1}, v{F+1}, v{V_T}")
        for r_ in range(16): A(f"v_mul_f32 v{V_O+r_}, v{F}, v{V_O+r_}")
        A("s_waitcnt vmcnt(0)")
        if self.pay16:
            for k in range(8):
                A(f"v_and_b32 v{V_PO+8+k}, 0xffff0000, v{V_PO+k}")
                A(f"v_lshlrev_b32 v{V_PO+k}, 16, v{V_PO+k}")
            for k in range(8):
                A(f"v_fmac_f32 v{V_O+2*k}, v{F+1}, v{V_PO+k}")
                A(f"v_fmac_f32 v{V_O+2*k+1}, v{F+1}, v{V_PO+8+k}")
        else:
            for r_ in range(16): A(f"v_fmac_f32 v{V_O+r_}, v{F+1}, v{V_PO+r_}")
        for k in range(8): A(f"v_cvt_pk_bf16_f32 v{V_P+k}, v{V_O+2*k}, v{V_O+2*k+1}")
        A("s_nop 1")
        for j in (0, 2):
            A(f"v_permlane32_swap_b32 v{V_P+2*j}, v{V_P+2*j+2}")
            A(f"v_permlane32_swap_b32 v{V_P+2*j+1}, v{V_P+2*j+3}")
        for j in (0, 2): A(f"buffer_store_dwordx4 {vr(V_P+2*j,4)}, v{V_T2}, {srd(SRD_O)}, s{S_T1} offen offset:{j*16} {self.oflags}")
        if self.stamps:
            self.label("L_stamps")
            A("s_waitcnt vmcnt(0)")
            if not self.st1: self.stamp(5)
            A("s_mov_b64 exec, 1")
            A(f"s_lshl_b32 s{S_T0}, s{S_XCC}, 8")
            A(f"s_or_b32 s{S_T0}, s{S_T0}, s{S_ROLE}")
            A(f"s_lshl_b32 s{S_T1}, s{S_CNT}, 16")
            A(f"s_or_b32 s{S_T0}, s{S_T0}, s{S_T1}")
            for i in range(6): A(f"v_mov_b32 v{V_S+i}, s{S_STAMP+2*i}")
            A(f"v_mov_b32 v{V_S+6}, s{S_T0}")
            A(f"v_mov_b32 v{V_S+7}, s2")
            A(f"s_lshl_b32 s{S_T0}, s{S_HALF}, 2")
            A(f"s_add_u32 s{S_T0}, s{S_T0}, s{S_WAVE}")
            A(f"s_lshl_b32 s{S_T0}, s{S_T0}, 5")
            A(f"s_add_u32 s{S_T0}, s{S_T0}, 0x7000")
            A(f"buffer_store_dwordx4 {vr(V_S,4)}, off, {srd(SRD_WS)}, s{S_T0}")
            A(f"buffer_store_dwordx4 {vr(V_S+4,4)}, off, {srd(SRD_WS)}, s{S_T0} offset:16")
        self.label("L_done")
        A("s_endpgm")
        self.label("L_switch")
        A(f"s_lshl_b32 s{S_T0}, s{S_PAIR}, 21")
        E(self.srd_ins(SRD_S, P_V, None, S_T0))
        E(self.half_params())
        for g in range(4): A(f"v_mov_b32 v{V_SVO+g}, v{V_VVO}")
        if self.warm == 2:
            A(f"s_cmp_eq_u32 s{S_PASS}, 0")
            A("s_cbranch_scc0 L_switch_ret")
            A(f"global_load_dword v{V_T2}, {vr(V_PML,2)}, off")
        A("s_branch L_switch_ret")
        self.label("L_ckA")
        A(f"s_cmp_eq_u32 s{S_J}, 30")
        A("s_cbranch_scc1 L_ckA30")
        A(f"s_cmp_eq_u32 s{S_J}, 0")
        A("s_cbranch_scc1 L_ckA0")
        A(f"s_or_b32 s{S_T0}, s{S_WAVE}, s{S_PASS}")
        A("s_cbranch_scc1 L_ckA_ret")
        A(f"s_cmp_eq_u32 s{S_J}, 28")
        A("s_cbranch_scc1 L_ckA28")
        A(f"s_and_b32 s{S_SH}, s{S_PAIR}, 1")
        A(f"s_lshl_b32 s{S_SH}, s{S_SH}, 4")
        A(f"s_lshl_b32 s{S_T1}, s{S_XCC}, 1")
        A(f"s_or_b32 s{S_T1}, s{S_T1}, 1")
        A(f"s_lshl_b32 s{S_T1}, s{S_T1}, s{S_SH}")
        A(f"v_mov_b32 v{V_TK}, s{S_T1}")
        A(f"s_lshr_b32 s{S_T1}, s{S_PAIR}, 1")
        A(f"s_lshl_b32 s{S_T1}, s{S_T1}, 2")
        A("s_mov_b64 exec, 1")
        A(f"buffer_atomic_xor v{V_TK}, off, {srd(SRD_DBG)}, s{S_T1} sc0")
        A("s_mov_b64 exec, -1")
        A("s_branch L_ckA_ret")
        self.label("L_ckA28")
        A(f"v_readfirstlane_b32 s{S_T0}, v{V_TK}")
        A("s_nop 0")
        A(f"s_lshr_b32 s{S_T0}, s{S_T0}, s{S_SH}")
        A(f"s_bfe_u32 s{S_T1}, s{S_T0}, 0x40001")
        A(f"s_cmp_eq_u32 s{S_T1}, s{S_XCC}")
        A(f"s_cselect_b32 s{S_T1}, {R_SOLO if self.force_solo else R_CON}, {R_SOLO}")
        A(f"s_bitcmp1_b32 s{S_T0}, 0")
        A(f"s_cselect_b32 s{S_T1}, s{S_T1}, {R_PUB}")
        A(f"v_mov_b32 v{V_T}, s{S_T1}")
        A(f"ds_write_b32 v{V_RA}, v{V_T}")
        A("s_waitcnt lgkmcnt(0)")
        A("s_branch L_ckA_ret")
        self.label("L_ckA30")
        A("s_mov_b64 vcc, -1")
        E(self.try_fetch("L_ckA_ret", again=self.late is None))
        A("s_branch L_ckA_ret")
        self.label("L_ckB")
        A("s_cbranch_vccnz L_ckB30")
        A("s_barrier")
        A(f"ds_read_b32 v{V_T}, v{V_RA}")
        if self.lastdeep:
            A(f"s_lshr_b32 s{S_T0}, {self.lastdeep}, s{S_HALF}")
            A(f"s_bitcmp1_b32 s{S_T0}, 0")
            A(f"s_cmov_b32 s{S_BOOST}, 2")
        A("s_waitcnt lgkmcnt(0)")
        A(f"v_readfirstlane_b32 s{S_ROLE}, v{V_T}")
        A("s_nop 0")
        A(f"s_cmp_eq_u32 s{S_ROLE}, {R_CON}")
        A("s_cbranch_scc0 L_ckB_ret")
        A(self.flag_load())
        A("s_branch L_ckB_ret")
        self.label("L_ckB30")
        if self.late is not None:
            A(f"s_add_u32 s{S_T1}, s{S_ROLE}, s{S_HAVE}")
            A(f"s_cmp_eq_u32 s{S_T1}, {R_CON}")
            A("s_cbranch_scc0 L_ckB31")
            A(f"s_waitcnt vmcnt({self.late})")
            A(self.flag_load())
            self.label("L_ckB31")
        A("s_waitcnt vmcnt(0)")
        A("s_barrier")
        E(self.try_fetch("L_ckB_ret"))
        A("s_branch L_ckB_ret")
        self.label("L_ckA0")
        A(f"s_cmp_eq_u32 s{S_HALF}, 0")
        A("s_cbranch_scc0 L_ckA_ret")
        A(f"v_add_u32 v{V_T}, {LDS_TV}, v{V_VA}")
        A(f"ds_read_b128 {vr(V_PF,4)}, v{V_PA} offset:{LDS_TP - LDS_PX}")
        A(f"ds_read_b64_tr_b16 {vr(V_F,2)}, v{V_T}")
        A(f"ds_read_b64_tr_b16 {vr(V_F+2,2)}, v{V_T} offset:2048")
        A("s_waitcnt lgkmcnt(0)")
        A(f"v_mfma_f32_32x32x16_bf16 {vr(V_O,16)}, {vr(V_F,4)}, {vr(V_PF,4)}, {vr(V_O,16)}")
        A("s_nop 3")
        A("s_branch L_ckA_ret")
        self.label("L_treep")
        E(self.pscale(V_TREF, range(V_TP, V_TP + 4)))
        A(f"ds_write_b128 v{V_PA}, {vr(V_TP,4)} offset:{LDS_TP - LDS_PX}")
        A("s_branch L_treep_ret")
        for blk in self.ool: E(blk)
        self.ool = []
        self.label("L_tree_ld")
        self.tree_loads()
        A("s_branch L_tree_ld_ret")
        self.label("L_tree")
        fl = first_loads(extra0 + 10)
        self.weave(su[npre:] + zero_o, fl[:nb-1])
        E(fl[nb-1])
        A("s_barrier")
        self.weave(qreads + self.tree_compute(), fl[nb:])
        A("s_branch L_main")
        self.label("L_solo")
        for x in (S_PASS, S_HAVE): A(f"s_mov_b32 s{x}, 1")
        A("s_waitcnt lgkmcnt(0)")
        A("s_barrier")
        A(f"s_mov_b32 s{S_BOOST}, 0")
        A(f"s_xor_b32 s{S_HALF}, s{S_HALF}, 1")
        A(f"v_mov_b32 v{V_PML}, {hex(f2u(-1e30))}")
        A(f"v_mov_b32 v{V_PML+1}, 0")
        for r_ in range(16): A(f"v_mov_b32 v{V_PO+r_}, 0")
        A(f"s_lshl_b32 s{S_T0}, s{S_PAIR}, 21")
        E(self.srd_ins(SRD_S, P_K, None, S_T0))
        E(self.half_params())
        for g in range(4): A(f"v_xor_b32 v{V_SVO+g}, {g*64}, v{V_KVO0}")
        self.is_tree()
        A("s_cbranch_scc0 L_solo2")
        self.tree_loads()
        A("s_waitcnt vmcnt(0)")
        E(self.tree_compute())
        self.label("L_solo2")
        for k in range(16): E(self.first_dma(k, None))
        A("s_branch L_main")
        self.label("L_code_end")
        self.L += ['.section .rodata,"a"', ".p2align 6", f".amdhsa_kernel {self.name}_kernel",
                   f"  .amdhsa_next_free_vgpr {NARCH + 256}", f"  .amdhsa_next_free_sgpr {NSGPR}", f"  .amdhsa_accum_offset {NARCH}",
                   "  .amdhsa_group_segment_fixed_size 0", "  .amdhsa_kernarg_size 72", "  .amdhsa_user_sgpr_count 2",
                   "  .amdhsa_user_sgpr_kernarg_segment_ptr 1", "  .amdhsa_system_sgpr_workgroup_id_x 1", ".end_amdhsa_kernel"]
        return "\n".join(self.L) + "\n"

def gen(name=NAME, **kw):
    return Gen(name=name, **kw).build()

from gen5 import read_stamps, report_stamps

if __name__ == '__main__':
    import json
    kw = json.loads(sys.argv[1]) if len(sys.argv) > 1 else {}
    s = gen(**kw)
    if len(sys.argv) > 2: open(sys.argv[2], 'w').write(s)
    else: print(s)
```

```python
import sys, math, struct

NAME = "standalone__tree_speculative_verify_tree_attention_over_candidate_token_tree__sampling"

def f2u(x):
    return struct.unpack('<I', struct.pack('<f', x))[0]

HEADER = """; Kernarg layout for this problem (72 bytes, ptrs only, base s[0:1]):
"""

P_Q, P_K, P_V, P_KT, P_VT, P_M, P_O, P_DBG, P_WS = 4, 8, 10, 12, 14, 16, 18, 20, 22
SRD_S, SRD_FB, SRD_Q, SRD_KT, SRD_VT, SRD_M, SRD_O, SRD_WS, SRD_DBG = 24, 28, 32, 36, 40, 44, 48, 52, 56
S_BOOST, S_CMP = 3, 6
S_WAVE, S_WBASE, S_OFF0, S_OFF1, S_J, S_C, S_PAIR, S_HALF = 60, 61, 62, 63, 64, 65, 66, 67
S_T0, S_T1, S_T2, S_T3 = 68, 69, 70, 71
S_ROLE, S_ONES, S_PASS, S_XCC, S_DO, S_OO, S_MLO, S_SH = 72, 73, 74, 75, 76, 77, 78, 79
S_STAMP = 80
S_M0 = 92
S_I16, S_DEEPJ, S_CNT = 96, 97, 99
S_THR, S_FORCE = 100, 101
NSGPR = 102
R_IDLE, R_PUB, R_CON, R_SOLO = 0, 1, 2, 3
V_LANE = 1
V_SVO = 2
V_VVO = 6
V_KVO0, V_L, V_MC, V_AL = 7, 8, 9, 10
V_T = 11
V_KA = 16
V_VA = 24
V_PA, V_PW = 26, 27
V_TK, V_RA, V_OA, V_L16 = 28, 29, 30, 31
V_Q = 32
V_F = 64
V_S = 96
V_P = 112
V_REF = 120
V_O = 200
V_PF = 168
V_TP = 152
V_TREF, V_MG, V_LG, V_K = 156, 157, 158, 159
V_ST = 160
V_PO = 216
V_PML = 232
V_L8 = 234
V_T2 = 235
V_MT, V_IDX, V_PRB, V_FBL, V_FBS, V_FT, V_FA, V_FB = 240, 241, 242, 243, 244, 245, 246, 247
NARCH = 248

LDS_Q = 131072
LDS_PX = LDS_Q
LDS_TV = LDS_PX + 16384
LDS_TP = LDS_TV + 4096
LDS_ST = LDS_TP + 1024
LDS_ROLE = LDS_ST + 2048
LDS_TOTAL = LDS_ROLE + 256
WS_PAIR = 32768
WS_FLAG = 0x6000
WS_FB = 128 * WS_PAIR
CSCALE = 128 ** -0.5 * math.log2(math.e)

def vr(a, n=1):
    return f"v{a}" if n == 1 else f"v[{a}:{a+n-1}]"
def srd(a):
    return f"s[{a}:{a+3}]"

class Gen:
    def __init__(self, name=NAME, depth=5, hi=6, stamps=False, noepi=False, xorpair=8, force_solo=False,
                 fb=True, lead=4, thr=16, lazy=8.0, lastdeep=3, evenmask=0x294a5294, oddmask=0x22224444, cmask=0, pahead=False,
                 st1=False, barmid=True, pre=200, warm=1, align=True, per=8, palate=False, basek='0'*16, basev='0'*16, oflags='', treehalf=1, armj=8, add=False, thr2=None, thr2j=24, dot=True, fastsw=True, st3=False, cfirst=False, nopost=0, postmode='atomic'):
        self.L = []
        self.__dict__.update(locals())
        self.uid = 0
        self.ool = []
    def A(self, s): self.L.append("    " + s)
    def label(self, s): self.L.append(s + ":")
    def emit(self, x):
        if isinstance(x, list):
            for y in x: self.emit(y)
        elif x.startswith('@L_'): self.label(x[1:])
        else: self.A(x)
    def newlab(self):
        self.uid += 1
        return f"L_u{self.uid}"
    def srd_ins(self, d, p, nbytes, off_sgpr=None):
        if off_sgpr is None:
            o = [f"s_mov_b32 s{d}, s{p}", f"s_and_b32 s{d+1}, s{p+1}, 0xffff"]
        else:
            o = [[f"s_add_u32 s{d}, s{p}, s{off_sgpr}", f"s_addc_u32 s{d+1}, s{p+1}, 0"], f"s_and_b32 s{d+1}, s{d+1}, 0xffff"]
        if nbytes is not None:
            o += [f"s_mov_b32 s{d+2}, {nbytes}", f"s_mov_b32 s{d+3}, 0x20000"]
        return o
    def stamp(self, i):
        if self.stamps:
            self.A(f"s_memrealtime s[{S_STAMP+2*i}:{S_STAMP+2*i+1}]")
            if i: self.A("s_waitcnt lgkmcnt(0)")

    def load_ins(self, n):
        return f"buffer_load_dwordx4 v{V_SVO + (n >> 1)}, {srd(SRD_S)}, s{S_OFF1 if n & 1 else S_OFF0} offen offset:{(n >> 1) * 1024} nt lds"
    def adv(self, a):
        return [f"s_add_u32 s{S_OFF0}, s{S_OFF0}, {a}", f"s_add_u32 s{S_OFF1}, s{S_OFF1}, {a}"]
    def first_dma(self, k, wait):
        o = self.adv(32768) if k == 8 else []
        return o + [f"s_add_u32 m0, s{S_WBASE}, {(k >> 3) * 8192 + (k & 1) * 4096}",
                    f"s_waitcnt vmcnt({wait})" if wait is not None else "s_nop 0", self.load_ins(k & 7)]

    def loop_loads(self, phase, hf):
        out = []
        per = self.per
        for n in range(8):
            k = (hf * 8 + n) % per
            grp = []
            end = self.newlab(); go = self.newlab()
            if phase == 'V': grp.append(f"s_cbranch_vccnz {end}")
            if self.fb and k == 0:
                grp += [f"v_add_u32 v{V_IDX}, 1, v{V_IDX}", f"buffer_load_dword v{V_PRB}, v{V_FBL}, {srd(SRD_FB)}, 0 offen sc1"]
            if self.fb and k == self.lead:
                grp.append(f"buffer_store_dword v{V_IDX}, v{V_FBS}, {srd(SRD_FB)}, 0 offen")
            grp.append(f"s_mov_b32 m0, s{S_M0 + hf * 2 + (n & 1)}")
            cnt = lambda w: sum(1 for p in (0, self.lead) if (k - p) % per < w) if self.fb else 0
            if phase == 'V' and hf == 1 and self.lastdeep:
                grp += [f"s_cmp_eq_u32 s{S_BOOST}, 3", f"s_cbranch_scc1 {go}"]
                if not self.add: grp += [f"s_cmp_eq_u32 s{S_BOOST}, 1"]
            bs = int((self.basek if phase == 'K' else self.basev)[hf * 8 + n])
            if self.add:
                grp += [f"s_cmp_eq_u32 s{S_BOOST}, 2", f"s_waitcnt vmcnt({self.hi + bs + cnt(self.hi + bs + 1)})", f"s_cbranch_scc1 {go}", f"s_cmp_eq_u32 s{S_BOOST}, 1"]
            if self.fb:
                grp += [f"s_waitcnt vmcnt({self.hi + bs - 1 + cnt(self.hi + bs)})", f"s_cbranch_scc1 {go}"]
            grp += [f"s_waitcnt vmcnt({self.depth + bs - 1 + cnt(self.depth + bs)})", f"@{go}", self.load_ins(n), f"@{end}"]
            out.append(grp)
        return out
    def fb_use(self, hf):
        if not self.fb or (self.per == 16 and hf == 0): return []
        o = ["s_waitcnt vmcnt(9)", f"v_sub_u32 v{V_FT}, v{V_PRB}, v{V_IDX}", f"v_cmp_gt_u32 s[{S_CMP}:{S_CMP+1}], {3 if self.per == 16 else 5}, v{V_FT}"]
        o += [f"s_lshr_b32 s{S_FORCE}, s{S_FORCE}, 1" if hf == 1 else "s_nop 0"]
        o += [f"s_and_b32 s{S_T1}, s{S_FORCE}, 1", f"s_bcnt1_i32_b64 s{S_T0}, s[{S_CMP}:{S_CMP+1}]", f"s_cmp_ge_u32 s{S_T0}, s{S_THR}",
              f"s_addc_u32 s{S_BOOST}, s{S_T1}, 0" if self.add else f"s_cselect_b32 s{S_BOOST}, 1, s{S_T1}"]
        return o

    def cost(self, ins):
        if isinstance(ins, list): return sum(self.cost(i) for i in ins)
        op = ins.split()[0]
        if op.startswith('v_mfma'): return 32
        if op in ('v_exp_f32', 'v_rcp_f32'): return 8
        if op == 's_nop': return 4 * (int(ins.split()[1]) + 1)
        if op.startswith('ds_read'): return 8
        if op.startswith('s_waitcnt'): return (40 if ins.endswith('(6)') or ins.endswith('(12)') else 10) if 'lgkm' in ins else 4
        if op.startswith('@'): return 0
        return 4
    def weave(self, comp, loads):
        total = sum(self.cost(i) for i in comp)
        n = len(loads); acc = 0; k = 0
        for ins in comp:
            while k < n and acc >= total * k / n:
                self.emit(loads[k]); k += 1
            self.emit(ins)
            acc += self.cost(ins)
        while k < n:
            self.emit(loads[k]); k += 1

    def qk(self, off, cinit=False):
        c = [f"ds_read_b128 {vr(V_F+4*s,4)}, v{V_KA+s} offset:{off}" for s in range(8)]
        for s in range(8):
            if s % 2 == 0: c.append(f"s_waitcnt lgkmcnt({6-s})")
            cin = vr(V_S, 16) if (s > 0 or cinit) else "0"
            c.append(f"v_mfma_f32_32x32x16_bf16 {vr(V_S,16)}, {vr(V_F+4*s,4)}, {vr(V_Q+4*s,4)}, {cin}")
        return c

    def newmax(self):
        t0, t1 = V_T, V_T + 1
        c = [f"v_mov_b32 v{t1}, v{t0}", "s_nop 1", f"v_permlane32_swap_b32 v{t0}, v{t1}", f"v_max_f32 v{t0}, v{t0}, v{t1}",
             f"v_mul_f32 v{t0}, s{S_C}, v{t0}", f"v_ceil_f32 v{t0}, v{t0}", f"v_max_f32 v{t0}, v{t0}, v{V_MC}",
             f"v_sub_f32 v{t1}, v{V_MC}, v{t0}", f"v_mov_b32 v{V_MC}, v{t0}", f"v_exp_f32 v{V_AL}, v{t1}",
             f"v_add_f32 v{V_MT}, {hex(f2u(self.lazy))}, v{t0}", f"v_mul_f32 v{V_MT}, {hex(f2u(1.0 / CSCALE))}, v{V_MT}",
             f"v_mul_f32 v{V_L}, v{V_L}, v{V_AL}"]
        return c
    def softmax(self, n=16, hf=None):
        c = []
        S = V_S; t0, t1 = V_T, V_T + 1
        c.append(f"v_max3_f32 v{t0}, v{S}, v{S+1}, v{S+2}")
        c.append(f"v_max3_f32 v{t1}, v{S+3}, v{S+4}, v{S+5}")
        i = 6; tog = 0
        while i + 1 < n:
            t = t0 if tog == 0 else t1
            c.append(f"v_max3_f32 v{t}, v{S+i}, v{S+i+1}, v{t}")
            i += 2; tog ^= 1
        c.append(f"v_max_f32 v{t0}, v{t0}, v{t1}")
        if hf is not None:
            l = self.newlab(); r = self.newlab()
            c.append([f"v_cmp_nle_f32 vcc, v{t0}, v{V_MT}", "s_nop 0", f"s_cbranch_vccnz {l}", f"@{r}"])
            self.ool.append([f"@{l}"] + self.newmax() + [f"s_branch {r}"])
        else:
            c += self.newmax()
        c += [f"v_fma_f32 v{S+r}, v{S+r}, s{S_C}, -v{V_MC}" for r in range(n)]
        c += [f"v_exp_f32 v{S+r}, v{S+r}" for r in range(n)]
        if self.dot:
            c += [f"v_cvt_pk_bf16_f32 v{V_P+r//2}, v{S+r}, v{S+r+1}" for r in range(0, n, 2)]
            return c + [f"v_dot2c_f32_bf16 v{V_L}, s{S_ONES}, v{V_P+r}" for r in range(n // 2)]
        c.append(f"v_add_f32 v{t0}, v{S}, v{S+1}")
        c += [f"v_cvt_pk_bf16_f32 v{V_P+r//2}, v{S+r}, v{S+r+1}" for r in range(0, n, 2)]
        c.append(f"v_add_f32 v{t1}, v{S+2}, v{S+3}")
        for r in range(4, n, 2):
            c.append(f"v_add_f32 v{t0}, v{t0}, v{S+r}")
            c.append(f"v_add_f32 v{t1}, v{t1}, v{S+r+1}")
        c.append(f"v_add_f32 v{V_L}, v{V_L}, v{t0}")
        c.append(f"v_add_f32 v{V_L}, v{V_L}, v{t1}")
        return c

    def ktile(self, hf):
        keep = [f"s_set_gpr_idx_on s{S_I16}, gpr_idx(DST)", "s_nop 0"]
        keep += [f"v_accvgpr_write_b32 a{8*hf+i}, v{V_P+i}" for i in range(8)]
        keep += [f"s_set_gpr_idx_idx s{S_J}", "s_nop 0", f"v_mov_b32 v{V_REF+hf}, v{V_MC}", "s_set_gpr_idx_off"]
        c = self.qk(hf * 8192) + ["s_nop 7", "s_nop 3"] + self.softmax(16, hf) + [keep]
        if hf == 1: c += [f"v_xor_b32 v{V_KA+s}, 16384, v{V_KA+s}" for s in range(8)]
        self.weave(c, self.loop_loads('K', hf))
    def pscale(self, ref, regs):
        c = [f"v_sub_f32 v{V_K}, v{V_MG}, v{ref}", f"v_min_f32 v{V_K}, 0x437f0000, v{V_K}", f"v_cvt_u32_f32 v{V_K}, v{V_K}",
             f"v_mul_u32_u24 v{V_K}, 0x800080, v{V_K}"]
        return c + [f"v_pk_sub_u16 v{r}, v{r}, v{V_K} clamp" for r in regs]
    def pfetch(self, d):
        g = [f"s_set_gpr_idx_on s{S_I16}, gpr_idx(SRC0)", "s_nop 0"]
        g += [f"v_accvgpr_read_b32 v{V_P+i}, a{8*d+i}" for i in range(8)]
        g += [f"s_set_gpr_idx_idx s{S_J}", "s_nop 0", f"v_mov_b32 v{V_AL}, v{V_REF+d}", "s_set_gpr_idx_off"]
        return [g] + self.pscale(V_AL, range(V_P, V_P + 8))
    def pwrite(self, b):
        return [f"ds_write_b128 v{V_PW}, {vr(V_P+4*u,4)} offset:{b*8192 + u*1024}" for u in range(2)]
    def vtile(self, hf):
        def reads(m):
            w, u = m >> 1, m & 1
            return [f"ds_read_b128 {vr(V_PF+4*m,4)}, v{V_PA} offset:{hf*8192 + w*2048 + u*1024}"] + \
                   [f"ds_read_b64_tr_b16 {vr(V_F+4*m+2*v,2)}, v{V_VA+(w>>1)} offset:{(w&1)*32768 + hf*8192 + (16*u+8*v)*256}" for v in range(2)]
        c = []
        for m in range(5): c += reads(m)
        fetch = self.pfetch(hf + 1)
        rest = fetch[1:]
        if hf == 1: rest = rest + [f"v_xor_b32 v{V_VA+b}, 16384, v{V_VA+b}" for b in range(2)]
        o = vr(V_O, 16)
        for m in range(8):
            c.append(f"s_waitcnt lgkmcnt({min(12, 21 - 3*m)})")
            c.append(f"v_mfma_f32_32x32x16_bf16 {o}, {vr(V_F+4*m,4)}, {vr(V_PF+4*m,4)}, {o}")
            if m < 3: c += reads(m + 5)
            elif m == 3: c.append(fetch[0])
            elif m < 7: c += rest[5*(m-4):5*(m-4)+5]
        c += self.pwrite(hf ^ 1)
        self.weave(c, self.loop_loads('V', hf))

    def tree_loads(self):
        A = self.A; E = self.emit
        A(f"s_lshl_b32 s{S_T2}, s{S_PAIR}, 12")
        E(self.srd_ins(SRD_KT, P_KT, 4096, S_T2))
        E(self.srd_ins(SRD_VT, P_VT, 4096, S_T2))
        A(f"s_lshr_b32 s{S_T2}, s{S_PAIR}, 4")
        A(f"s_lshl_b32 s{S_T2}, s{S_T2}, 9")
        E(self.srd_ins(SRD_M, P_M, 512, S_T2))
        A(f"s_add_u32 m0, s{S_WBASE}, 16384")
        A(f"v_and_b32 v{V_T2}, 15, v{V_LANE}")
        for g in range(4): A(f"buffer_load_dwordx4 v{V_SVO+g}, {srd(SRD_KT)}, 0 offen offset:{g*1024} lds")
        A(f"s_mov_b32 m0, {LDS_TV}")
        A(f"v_lshrrev_b32 v{V_T2+1}, 5, v{V_LANE}")
        for g in range(4): A(f"buffer_load_dwordx4 v{V_VVO}, {srd(SRD_VT)}, 0 offen offset:{g*1024} lds")
        A(f"v_lshlrev_b32 v{V_T2}, 5, v{V_T2}")
        A(f"v_lshl_add_u32 v{V_T2}, v{V_T2+1}, 3, v{V_T2}")
        A(f"buffer_load_dwordx2 {vr(V_P,2)}, v{V_T2}, {srd(SRD_M)}, 0 offen")
        A(f"buffer_load_dwordx2 {vr(V_P+2,2)}, v{V_T2}, {srd(SRD_M)}, 0 offen offset:16")
    def tree_compute(self):
        KM = 1e9 * math.sqrt(128.0)
        c = [f"v_mov_b32 v{V_T}, {hex(f2u(KM))}"]
        for j in range(4):
            c += [f"v_lshlrev_b32 v{V_S+2*j}, 16, v{V_P+j}", f"v_and_b32 v{V_S+2*j+1}, 0xffff0000, v{V_P+j}"]
        c += [f"v_fma_f32 v{V_S+r}, v{V_S+r}, v{V_T}, -v{V_T}" for r in range(8)]
        c += [f"v_mov_b32 v{V_S+r}, 0" for r in range(8, 16)]
        c.append("s_waitcnt lgkmcnt(0)")
        c += self.qk(16384, cinit=True) + ["s_nop 7", "s_nop 3"] + self.softmax(8)
        c += [f"v_mov_b32 v{V_TP+i}, v{V_P+i}" for i in range(4)] + [f"v_mov_b32 v{V_TREF}, v{V_MC}"]
        return c

    def payload_loads(self):
        return [f"buffer_load_dwordx4 {vr(V_PO+4*j,4)}, v{V_L16}, {srd(SRD_WS)}, 0 offen offset:{j*1024} sc1" for j in range(2)]
    def payload_check(self):
        return [f"v_max3_u32 v{V_T}, v{V_PO}, v{V_PO+1}, v{V_PO+2}", f"v_max3_u32 v{V_T+1}, v{V_PO+3}, v{V_PO+4}, v{V_PO+5}",
                f"v_max3_u32 v{V_T}, v{V_PO+6}, v{V_PO+7}, v{V_T}", f"v_max_u32 v{V_T}, v{V_T}, v{V_T+1}",
                f"v_cmp_eq_u32 s[{S_CMP}:{S_CMP+1}], -1, v{V_T}", "s_nop 0", f"s_cmp_eq_u64 s[{S_CMP}:{S_CMP+1}], 0"]
    def factors(self):
        return [f"v_max_f32 v{V_T}, v{V_MG}, v{V_PML}", f"v_sub_f32 v{V_FA}, v{V_MG}, v{V_T}", f"v_sub_f32 v{V_FB}, v{V_PML}, v{V_T}",
                f"v_exp_f32 v{V_FB}, v{V_FB}", f"v_exp_f32 v{V_FA}, v{V_FA}", f"v_mul_f32 v{V_FB}, v{V_FB}, v{V_PML+1}",
                f"v_fma_f32 v{V_T}, v{V_FA}, v{V_LG}, v{V_FB}", f"v_rcp_f32 v{V_T}, v{V_T}", "s_nop 0",
                f"v_mul_f32 v{V_FA}, v{V_FA}, v{V_T}", f"v_mul_f32 v{V_FB}, v{V_FB}, v{V_T}"]
    def warm_code(self):
        l = self.newlab()
        return [f"s_getpc_b64 s[{S_CMP}:{S_CMP+1}]", f"@{l}", f"s_lshr_b32 s{S_T2}, s2, 3", f"s_lshl_b32 s{S_T2}, s{S_T2}, 2", f"s_add_u32 s{S_T2}, s{S_T2}, s{S_WAVE}",
                f"s_lshl_b32 s{S_T2}, s{S_T2}, 7", f"s_min_u32 s{S_T2}, s{S_T2}, L_code_end-{self.name}_kernel-4",
                f"s_sub_u32 s{S_CMP}, s{S_CMP}, {l}-{self.name}_kernel", f"s_subb_u32 s{S_CMP+1}, s{S_CMP+1}, 0",
                f"s_add_u32 s{S_CMP}, s{S_CMP}, s{S_T2}", f"s_addc_u32 s{S_CMP+1}, s{S_CMP+1}, 0",
                f"v_mov_b32 v{V_PML}, s{S_CMP}", f"v_mov_b32 v{V_PML+1}, s{S_CMP+1}",
                f"global_load_dword v{V_FT}, {vr(V_PML,2)}, off"]
    def half_params(self):
        return [f"s_lshl_b32 s{S_OFF0}, s{S_HALF}, 2", f"s_add_u32 s{S_OFF0}, s{S_OFF0}, s{S_WAVE}",
                f"s_lshl_b32 s{S_OFF0}, s{S_OFF0}, 12", f"s_add_u32 s{S_OFF1}, s{S_OFF0}, 65536"]
    def is_tree(self):
        self.A(f"s_cmp_eq_u32 s{S_OFF0}, {(4 * self.treehalf + 3) << 12}")

    def build(self):
        A = self.A; E = self.emit
        D = self.depth
        self.L.append(HEADER + f"; @launch grid=(256,1,1) block=(256,1,1) lds={LDS_TOTAL}")
        self.L += ['.amdgcn_target "amdgcn-amd-amdhsa--gfx950"', ".text", f".globl {self.name}_kernel"]
        if self.align: self.L += [".p2align 12", ".fill 832, 4, 0xbf800000"]
        self.L += [".p2align 8", f".type {self.name}_kernel,@function"]
        self.label(f"{self.name}_kernel")
        A("s_cmp_ge_u32 s2, 256")
        A("s_cbranch_scc1 L_done")
        A("s_load_dwordx16 s[8:23], s[0:1], 8")
        A("s_load_dwordx2 s[4:5], s[0:1], 0")
        self.stamp(0)
        A(f"v_lshrrev_b32 v{V_T}, 6, v0")
        A(f"v_and_b32 v{V_LANE}, 63, v0")
        A(f"v_readfirstlane_b32 s{S_WAVE}, v{V_T}")
        xb = self.xorpair.bit_length() - 1
        A(f"s_lshr_b32 s{S_T0}, s2, {xb+1}")
        A(f"s_lshl_b32 s{S_T0}, s{S_T0}, {xb}")
        A(f"s_and_b32 s{S_PAIR}, s2, {self.xorpair-1}")
        A(f"s_or_b32 s{S_PAIR}, s{S_PAIR}, s{S_T0}")
        A(f"s_bfe_u32 s{S_HALF}, s2, {hex(0x10000 | xb)}")
        row, cp = V_T, V_T + 1
        A(f"v_lshrrev_b32 v{row}, 4, v{V_LANE}")
        A(f"v_and_b32 v{cp}, 15, v{V_LANE}")
        A(f"s_lshl_b32 s{S_WBASE}, s{S_WAVE}, 15")
        A(f"v_xor_b32 v{V_T+2}, v{row}, v{cp}")
        A(f"v_lshlrev_b32 v{V_T+3}, 8, v{row}")
        A(f"v_lshl_add_u32 v{V_SVO}, v{V_T+2}, 4, v{V_T+3}")
        for g in range(1, 4): A(f"v_xor_b32 v{V_SVO+g}, {g*64}, v{V_SVO}")
        E(self.half_params())
        A(f"s_lshl_b32 s{S_T0}, s{S_PAIR}, 21")
        A(f"s_mov_b32 s{SRD_S+2}, {1<<21}")
        A(f"s_mov_b32 s{SRD_S+3}, 0x20000")
        A("s_waitcnt lgkmcnt(0)")
        if self.st1: self.stamp(3)
        E(self.srd_ins(SRD_S, P_K, None, S_T0))
        for k in range(D): E(self.first_dma(k, None))
        if self.warm: E(self.warm_code())
        A(f"s_lshl_b32 s{S_T2}, s{S_WAVE}, 7")
        A(f"s_and_b32 s{S_T2}, s{S_T2}, 128")
        A(f"v_xor_b32 v{V_T2+2}, s{S_T2}, v{V_SVO}")
        A(f"v_xor_b32 v{V_T2+3}, s{S_T2}, v{V_SVO+1}")
        A(f"s_lshl_b32 s{S_T1}, s{S_PAIR}, 13")
        A(f"s_lshl_b32 s{S_T3}, s{S_WAVE}, 11")
        A(f"s_add_u32 m0, s{S_T3}, {LDS_Q}")
        E(self.srd_ins(SRD_Q, P_Q, 8192, S_T1))
        A(f"buffer_load_dwordx4 v{V_T2+2}, {srd(SRD_Q)}, s{S_T3} offen lds")
        A(f"buffer_load_dwordx4 v{V_T2+3}, {srd(SRD_Q)}, s{S_T3} offen offset:1024 lds")
        A(f"v_lshlrev_b32 v{V_T+2}, 2, v{row}")
        A(f"v_xor_b32 v{V_T+2}, v{V_T+2}, v{cp}")
        A(f"v_lshl_add_u32 v{V_VVO}, v{V_T+2}, 4, v{V_T+3}")
        self.is_tree()
        A("s_cbranch_scc1 L_tree_ld")
        self.label("L_tree_ld_ret")
        r, h = V_T, V_T + 1
        su = [f"v_and_b32 v{r}, 31, v{V_LANE}", f"v_lshrrev_b32 v{h}, 5, v{V_LANE}"]
        extra0 = 2
        if self.fb:
            su += [f"s_and_b32 s{S_T2}, s2, 7", f"s_mul_i32 s{S_T2}, s{S_T2}, 4352", f"s_add_u32 s{S_T2}, s{S_T2}, {WS_FB}"]
            su += self.srd_ins(SRD_FB, P_WS, 128, S_T2)
            su += [f"s_lshr_b32 s{S_T2}, s2, 3", f"s_lshl_b32 s{S_T2}, s{S_T2}, 2",
                   f"v_lshl_add_u32 v{V_FBS}, v0, 7, s{S_T2}", f"v_mov_b32 v{V_IDX}, {'s%d' % S_HALF if self.pahead and not self.palate else 0}",
                   f"buffer_store_dword v{V_IDX}, v{V_FBS}, {srd(SRD_FB)}, 0 offen", f"v_lshlrev_b32 v{V_FBL}, 2, v{r}"]
            extra0 = 3
        extra0 += 1
        assert self.pre >= 200
        if self.warm: extra0 += 1
        npre_min = len(su)
        su += [f"v_and_b32 v{V_T+2}, 15, v{r}", f"v_xor_b32 v{V_T+2}, v{V_T+2}, v{h}", f"v_lshlrev_b32 v{V_T+3}, 8, v{r}",
               f"v_lshl_add_u32 v{V_T+3}, v{V_T+2}, 4, v{V_T+3}"]
        su += [f"v_xor_b32 v{V_KA+s}, {s*32}, v{V_T+3}" for s in range(8)]
        su += [f"v_add_u32 v{V_F+s}, {LDS_Q}, v{V_KA+s}" for s in range(8)]
        su += [f"v_add_u32 v{V_KA+s}, s{S_WBASE}, v{V_KA+s}" for s in range(8)]
        i4 = V_T + 2
        su += [f"v_bfe_u32 v{i4}, v{V_LANE}, 2, 2", f"v_lshl_add_u32 v{V_T+3}, v{h}, 2, v{i4}", f"v_lshlrev_b32 v{V_T+3}, 8, v{V_T+3}",
               f"v_xor_b32 v{i4}, s{S_WAVE}, v{i4}",
               f"v_lshl_add_u32 v{V_T+3}, v{i4}, 6, v{V_T+3}", f"v_bfe_u32 v{V_T+4}, v{V_LANE}, 4, 1",
               f"v_lshl_add_u32 v{V_T+3}, v{V_T+4}, 5, v{V_T+3}", f"v_and_b32 v{V_T+4}, 3, v{V_LANE}",
               f"v_lshl_add_u32 v{V_VA}, v{V_T+4}, 3, v{V_T+3}", f"v_add_u32 v{V_VA+1}, 0x10000, v{V_VA}",
               f"v_lshlrev_b32 v{V_PA}, 4, v{V_LANE}", f"v_add_u32 v{V_PA}, {LDS_PX}, v{V_PA}", f"v_add_u32 v{V_PW}, s{S_T3}, v{V_PA}",
               f"v_mov_b32 v{V_MG}, {hex(f2u(-1e30))}", f"v_mov_b32 v{V_PRB}, 0x7fffffff"]
        su += [f"s_mov_b32 s{S_ONES}, 0x3f803f80", f"s_mov_b32 s{S_C}, {hex(f2u(CSCALE))}", f"s_getreg_b32 s{S_XCC}, hwreg(HW_REG_XCC_ID, 0, 4)"]
        su += [f"s_add_u32 s{S_M0+i}, s{S_WBASE}, {i*4096}" for i in range(4)]
        su += [f"s_mov_b32 s{x}, 0" for x in (S_PASS, S_BOOST)]
        su += [f"v_mov_b32 v{V_MT}, {hex(f2u(-1e30))}", f"v_mov_b32 v{V_MC}, {hex(f2u(-1e30))}", f"v_mov_b32 v{V_L}, 0",
               f"v_mov_b32 v{V_KVO0}, v{V_SVO}"]
        su += [f"s_lshl_b32 s{S_T2}, s{S_PAIR}, 15"] + self.srd_ins(SRD_WS, P_WS, WS_PAIR, S_T2)
        su += self.srd_ins(SRD_O, P_O, 8192, S_T1)
        su += [f"s_lshl_b32 s{S_MLO}, s{S_WAVE}, 9", f"s_add_u32 s{S_MLO}, s{S_MLO}, 8192",
               f"v_mov_b32 v{V_RA}, {LDS_ROLE}", f"v_lshlrev_b32 v{V_L8}, 3, v{V_LANE}",
               f"v_lshl_add_u32 v{V_L16}, v{V_LANE}, 4, s{S_T3}",
               f"v_lshlrev_b32 v{V_OA}, 8, v{r}", f"v_lshl_add_u32 v{V_OA}, v{h}, 4, v{V_OA}", f"s_lshl_b32 s{S_OO}, s{S_WAVE}, 6",
               f"s_lshl_b32 s{S_DO}, s{S_WAVE}, 7", f"s_add_u32 s{S_DO}, s{S_DO}, 12288", f"s_add_u32 s{S_ROLE}, s{S_HALF}, {R_PUB}",
               f"buffer_load_dword v{V_TK}, off, {srd(SRD_WS)}, s{S_DO} sc1",
               [f"s_bitcmp1_b32 {self.lastdeep}, s{S_HALF}", f"s_cselect_b32 s{S_DEEPJ}, 28, 63"]]
        if self.fb:
            su += [f"s_mov_b32 s{S_THR}, {2*self.thr}", f"s_mov_b32 s{S_FORCE}, {hex(self.evenmask)}",
                   [f"s_bitcmp1_b32 s{S_XCC}, 0", f"s_cmov_b32 s{S_FORCE}, {hex(self.oddmask)}"]]
            if self.cmask:
                su += [f"s_mul_i32 s{S_T2}, s{S_HALF}, {hex(self.cmask)}", f"s_or_b32 s{S_FORCE}, s{S_FORCE}, s{S_T2}"]
        zero_o = [f"v_mov_b32 v{V_O+x}, 0" for x in range(16)]
        npre = max(npre_min, min(self.pre, len(su)))
        E(su[:npre])
        first_loads = lambda extra: [self.first_dma(k, D - 1 + (extra if k < 2 * D else 0)) for k in range(D, 16)]
        nb = D + 1
        qreads = [f"ds_read_b128 {vr(V_Q+4*s,4)}, v{V_F+s}" for s in range(8)]
        if self.st1: self.stamp(4)
        self.is_tree()
        A("s_cbranch_scc1 L_tree")
        fl = first_loads(extra0)
        if self.st1: fl[0] = fl[0] + [f"s_memrealtime s[{S_STAMP+10}:{S_STAMP+11}]", "s_waitcnt lgkmcnt(0)"]
        self.weave(su[npre:], fl[:nb-1])
        E(fl[nb-1])
        A("s_barrier")
        self.weave(qreads + zero_o, fl[nb:])
        self.label("L_main")
        A("s_waitcnt lgkmcnt(0)")
        self.stamp(1)
        for x in (S_J, S_I16): A(f"s_mov_b32 s{x}, 0")
        toggle = [f"s_xor_b32 s{S_M0+i}, s{S_M0+i}, 16384" for i in range(4)]
        A("s_branch L_kloop")
        kool = len(self.L)
        self.label("L_kloop")
        E(toggle + self.adv(98304) + self.fb_use(0))
        A(f"s_cmp_eq_u32 s{S_J}, 30")
        A("s_cbranch_scc1 L_switch")
        self.label("L_switch_ret")
        A("s_waitcnt vmcnt(8)")
        A("s_barrier")
        A(f"s_cmp_eq_u32 s{S_BOOST}, 1")
        self.ktile(0)
        E(self.adv(32768) + self.fb_use(1))
        A("s_waitcnt vmcnt(8)")
        if self.barmid: A("s_barrier")
        A(f"s_cmp_eq_u32 s{S_BOOST}, 1")
        self.ktile(1)
        A(f"s_add_u32 s{S_I16}, s{S_I16}, 16")
        A(f"s_add_u32 s{S_J}, s{S_J}, 2")
        A(f"s_cmp_lt_u32 s{S_J}, 32")
        A("s_cbranch_scc1 L_kloop")
        body = self.L[kool:]; self.L = self.L[:kool]
        self.label("L_tree_ld")
        self.tree_loads()
        A("s_branch L_tree_ld_ret")
        for blk in self.ool: E(blk)
        self.ool = []
        self.label("L_switch")
        A(f"s_lshl_b32 s{S_T0}, s{S_PAIR}, 21")
        E(self.srd_ins(SRD_S, P_V, None, S_T0))
        E(self.half_params())
        for g in range(4): A(f"v_mov_b32 v{V_SVO+g}, v{V_VVO}")
        A("s_branch L_switch_ret")
        self.L += body
        if self.st3: self.stamp(3)
        A(f"v_mov_b32 v{V_T}, v{V_L}")
        A(f"v_mov_b32 v{V_T+1}, v{V_L}")
        A(f"v_add_u32 v{V_T2}, {LDS_ST}, v{V_L8}")
        A(f"s_lshl_b32 s{S_T0}, s{S_WAVE}, 9")
        A(f"v_permlane32_swap_b32 v{V_T}, v{V_T+1}")
        A(f"v_add_u32 v{V_T2+1}, s{S_T0}, v{V_T2}")
        A(f"v_mov_b32 v{V_S}, v{V_MC}")
        A(f"v_add_f32 v{V_S+1}, v{V_T}, v{V_T+1}")
        A(f"ds_write_b64 v{V_T2+1}, {vr(V_S,2)}")
        for x in (S_J, S_I16): A(f"s_mov_b32 s{x}, 0")
        fetch = self.pfetch(0)
        E(fetch[0])
        A("s_waitcnt lgkmcnt(0)")
        A("s_barrier")
        for w in range(4): A(f"ds_read_b64 {vr(V_ST+2*w,2)}, v{V_T2} offset:{w*512}")
        A(f"v_mov_b32 v{V_T}, v{V_MG}")
        if self.pahead and self.palate:
            A(f"s_xor_b32 s{S_T0}, s{S_HALF}, 1")
            A(f"v_subrev_u32 v{V_IDX}, s{S_T0}, v{V_IDX}")
        A("s_waitcnt lgkmcnt(0)")
        A(f"v_max3_f32 v{V_MG}, v{V_ST}, v{V_ST+2}, v{V_ST+4}")
        A(f"v_max_f32 v{V_MG}, v{V_MG}, v{V_ST+6}")
        E(fetch[1:] + self.pwrite(0))
        A(f"s_lshl_b32 s{S_T0}, s{S_HALF}, 2")
        A(f"s_add_u32 s{S_T0}, s{S_T0}, s{S_WAVE}")
        A(f"s_cmp_eq_u32 s{S_T0}, {4 * self.treehalf + 3}")
        A("s_cbranch_scc1 L_treep")
        self.label("L_treep_ret")
        F = V_S + 8
        lsum = [f"v_sub_f32 v{F+w}, v{V_ST+2*w}, v{V_MG}" for w in range(4)] + [f"v_exp_f32 v{F+w}, v{F+w}" for w in range(4)]
        lsum += [f"v_mul_f32 v{V_LG}, v{F}, v{V_ST+1}"] + [f"v_fmac_f32 v{V_LG}, v{F+w}, v{V_ST+2*w+1}" for w in range(1, 4)]
        oscale = [f"v_sub_f32 v{V_T}, v{V_T}, v{V_MG}", f"v_exp_f32 v{V_T}, v{V_T}", "s_nop 0"] + [f"v_mul_f32 v{V_O+r_}, v{V_T}, v{V_O+r_}" for r_ in range(16)]
        if self.fastsw:
            A(f"s_cmp_eq_u32 s{S_PASS}, 1")
            A("s_cbranch_scc1 L_oscale")
            self.ool.append(["@L_oscale"] + oscale + ["s_branch L_vloop"])
        else:
            E(lsum + oscale)
        if self.st3: self.stamp(4)
        self.label("L_vloop")
        E(toggle + self.adv(98304) + self.fb_use(0))
        if self.thr2 is not None:
            A(f"s_cmp_eq_u32 s{S_J}, {self.thr2j}")
            A(f"s_cmov_b32 s{S_THR}, {2*self.thr2}")
        A(f"s_cmp_eq_u32 s{S_J}, 30")
        A("s_cselect_b64 vcc, -1, 0")
        ckmask = 1 | sum(1 << j for j in (self.armj, self.armj + 2, self.armj + 6, self.armj + 8, self.armj + 12, self.armj + 14))
        A(f"s_bitcmp1_b32 {hex(ckmask)}, s{S_J}")
        A("s_waitcnt vmcnt(8) lgkmcnt(0)")
        A("s_barrier")
        A("s_cbranch_scc1 L_ckA")
        self.label("L_ckA_ret")
        A(f"s_cmp_eq_u32 s{S_BOOST}, 1")
        self.vtile(0)
        E(self.adv(32768) + self.fb_use(1))
        if self.lastdeep:
            A(f"s_cmp_eq_u32 s{S_J}, s{S_DEEPJ}")
            A(f"s_cmov_b32 s{S_BOOST}, 3")
        A("s_cbranch_vccz L_notlast")
        A(f"s_cmp_eq_u32 s{S_ROLE}, {R_CON}")
        A("s_waitcnt vmcnt(0) lgkmcnt(0)")
        A("s_barrier")
        A("s_cbranch_scc0 L_ckB_ret")
        E(self.payload_loads())
        A("s_branch L_ckB_ret")
        self.label("L_notlast")
        A("s_waitcnt vmcnt(8) lgkmcnt(0)")
        A("s_barrier")
        self.label("L_ckB_ret")
        A(f"s_cmp_eq_u32 s{S_BOOST}, 1")
        self.vtile(1)
        A(f"s_add_u32 s{S_I16}, s{S_I16}, 16")
        A(f"s_add_u32 s{S_J}, s{S_J}, 2")
        A("s_cbranch_vccz L_vloop")
        self.stamp(2)
        if not self.st1 and not self.st3 and self.stamps:
            for i in (3, 4): A(f"s_mov_b32 s{S_STAMP+2*i}, s{S_STAMP+4}")
        A(f"s_mov_b32 s{S_CNT}, 0")
        if self.noepi: A("s_branch L_stamps")
        pub = [f"s_cmp_eq_u32 s{S_ROLE}, {R_PUB}", "s_cbranch_scc0 L_solo", "s_nop 3"]
        pub += [f"v_mul_f32 v{V_O+k}, v{V_FA}, v{V_O+k}" for k in range(16)]
        pub += [f"v_cvt_pk_bf16_f32 v{V_P+k}, v{V_O+2*k}, v{V_O+2*k+1}" for k in range(8)]
        pub += [f"v_min_u32 v{V_P+k}, -2, v{V_P+k}" for k in range(8)]
        pub += [f"buffer_store_dwordx4 {vr(V_P+4*j,4)}, v{V_L16}, {srd(SRD_WS)}, 0 offen offset:{j*1024}" for j in range(2)]
        pub += ["s_branch L_stamps" if self.stamps else "s_endpgm"]
        poll = ["@L_poll"] + self.payload_loads() + [f"s_add_u32 s{S_CNT}, s{S_CNT}, 1", f"s_cmp_gt_u32 s{S_CNT}, 0x100000", "s_cbranch_scc1 L_done"]
        A(f"s_cmp_eq_u32 s{S_ROLE}, {R_CON}")
        if self.cfirst:
            A("s_cbranch_scc0 L_pub")
            self.tail_ool = poll + ["s_branch L_poll_chk", "@L_pub"] + pub
        else:
            A("s_cbranch_scc1 L_poll_chk")
            E(pub + poll)
            self.tail_ool = []
        self.label("L_poll_chk")
        A("s_waitcnt vmcnt(0)")
        E(self.payload_check())
        A("s_cbranch_scc0 L_poll")
        self.label("L_combine")
        for k in range(8):
            A(f"v_and_b32 v{V_PO+8+k}, 0xffff0000, v{V_PO+k}")
            A(f"v_lshlrev_b32 v{V_PO+k}, 16, v{V_PO+k}")
        for k in range(16): A(f"v_mul_f32 v{V_PO+k}, v{V_FB}, v{V_PO+k}")
        for k in range(8):
            A(f"v_fmac_f32 v{V_PO+k}, v{V_FA}, v{V_O+2*k}")
            A(f"v_fmac_f32 v{V_PO+8+k}, v{V_FA}, v{V_O+2*k+1}")
        for k in range(8): A(f"v_cvt_pk_bf16_f32 v{V_P+k}, v{V_PO+k}, v{V_PO+8+k}")
        A("s_nop 1")
        for j in (0, 2):
            A(f"v_permlane32_swap_b32 v{V_P+2*j}, v{V_P+2*j+2}")
            A(f"v_permlane32_swap_b32 v{V_P+2*j+1}, v{V_P+2*j+3}")
        for j in (0, 2): A(f"buffer_store_dwordx4 {vr(V_P+2*j,4)}, v{V_OA}, {srd(SRD_O)}, s{S_OO} offen offset:{j*16} {self.oflags}")
        if self.stamps:
            self.label("L_stamps")
            A("s_waitcnt vmcnt(0)")
            if not self.st1: self.stamp(5)
            A("s_mov_b64 exec, 1")
            A(f"s_lshl_b32 s{S_T0}, s{S_XCC}, 8")
            A(f"s_or_b32 s{S_T0}, s{S_T0}, s{S_ROLE}")
            A(f"s_lshl_b32 s{S_T1}, s{S_CNT}, 16")
            A(f"s_or_b32 s{S_T0}, s{S_T0}, s{S_T1}")
            for i in range(6): A(f"v_mov_b32 v{V_S+i}, s{S_STAMP+2*i}")
            A(f"v_mov_b32 v{V_S+6}, s{S_T0}")
            A(f"v_mov_b32 v{V_S+7}, s2")
            A(f"s_lshl_b32 s{S_T0}, s{S_HALF}, 2")
            A(f"s_add_u32 s{S_T0}, s{S_T0}, s{S_WAVE}")
            A(f"s_lshl_b32 s{S_T0}, s{S_T0}, 5")
            A(f"s_add_u32 s{S_T0}, s{S_T0}, 0x7000")
            A(f"buffer_store_dwordx4 {vr(V_S,4)}, off, {srd(SRD_WS)}, s{S_T0}")
            A(f"buffer_store_dwordx4 {vr(V_S+4,4)}, off, {srd(SRD_WS)}, s{S_T0} offset:16")
        self.label("L_done")
        A("s_endpgm")
        E(self.tail_ool)
        self.label("L_ckA")
        A(f"s_cmp_eq_u32 s{S_J}, 0")
        A("s_cbranch_scc1 L_ckA0")
        A(f"s_cmp_eq_u32 s{S_ROLE}, {R_PUB}")
        A("s_cbranch_scc0 L_ckA_con")
        tag = [f"v_add_u32 v{V_TK}, 16, v{V_TK}", f"v_and_b32 v{V_TK}, -16, v{V_TK}", f"v_or_b32 v{V_TK}, s{S_XCC}, v{V_TK}"]
        A(f"s_cmp_eq_u32 s{S_J}, {self.armj + 8}")
        A("s_cbranch_scc1 L_ckA22")
        A(f"s_cmp_eq_u32 s{S_J}, {self.armj + 6}")
        A("s_cbranch_scc0 L_ckA_ret")
        A(f"buffer_load_dword v{V_PO}, off, {srd(SRD_WS)}, s{S_DO} sc1")
        A("s_branch L_ckA_ret")
        self.label("L_ckA22")
        E(tag)
        A(f"v_cmp_ne_u32 s[{S_CMP}:{S_CMP+1}], v{V_TK}, v{V_PO}")
        if self.fastsw: E(lsum)
        A(f"s_cmp_eq_u64 s[{S_CMP}:{S_CMP+1}], 0")
        A(f"s_cselect_b32 s{S_ROLE}, {R_IDLE if self.force_solo else R_PUB}, {R_IDLE}")
        A(f"s_cmp_eq_u32 s{S_ROLE}, {R_PUB}")
        A("s_cbranch_scc0 L_ckA_ret")
        A(f"v_min_u32 v{V_PML}, -2, v{V_MG}")
        A(f"v_min_u32 v{V_PML+1}, -2, v{V_LG}")
        A(f"v_rcp_f32 v{V_FA}, v{V_LG}")
        A(f"buffer_store_dwordx2 {vr(V_PML,2)}, v{V_L8}, {srd(SRD_WS)}, s{S_MLO} offen")
        A("s_branch L_ckA_ret")
        self.label("L_ckA_con")
        A(f"s_cmp_eq_u32 s{S_J}, {self.armj + 14}")
        A("s_cbranch_scc1 L_ckA28")
        A(f"s_cmp_eq_u32 s{S_ROLE}, {R_CON}")
        A("s_cbranch_scc0 L_ckA_ret")
        A(f"s_cmp_eq_u32 s{S_J}, {self.armj + 12}")
        A("s_cbranch_scc1 L_ckA26")
        A(f"s_cmp_eq_u32 s{S_J}, {self.armj + 2}")
        A("s_cbranch_scc1 L_ckA_tag")
        A(f"s_cmp_eq_u32 s{S_J}, {self.armj}")
        A("s_cbranch_scc0 L_ckA_ret")
        for k in range(4): A(f"v_mov_b32 v{V_PO+k}, -1")
        A(f"buffer_store_dwordx2 {vr(V_PO,2)}, v{V_L8}, {srd(SRD_WS)}, s{S_MLO} offen")
        for j in range(2): A(f"buffer_store_dwordx4 {vr(V_PO,4)}, v{V_L16}, {srd(SRD_WS)}, 0 offen offset:{j*1024}")
        A("s_branch L_ckA_ret")
        self.label("L_ckA_tag")
        E(tag)
        A("s_mov_b64 exec, 1")
        A(f"buffer_store_dword v{V_TK}, off, {srd(SRD_WS)}, s{S_DO}")
        A("s_mov_b64 exec, -1")
        A("s_branch L_ckA_ret")
        self.label("L_ckA26")
        A(f"buffer_load_dwordx2 {vr(V_PML,2)}, v{V_L8}, {srd(SRD_WS)}, s{S_MLO} offen sc1")
        A("s_branch L_ckA_ret")
        self.label("L_ckA28")
        A(f"s_cmp_eq_u32 s{S_ROLE}, {R_IDLE}")
        A("s_cbranch_scc1 L_ckA_ret")
        A(f"s_cmp_eq_u32 s{S_ROLE}, {R_CON}")
        A("s_cbranch_scc0 L_ckA28b")
        A(f"v_max_u32 v{V_T}, v{V_PML}, v{V_PML+1}")
        A(f"s_lshl_b32 s{S_T0}, s{S_WAVE}, 2")
        A(f"v_cmp_eq_u32 s[{S_CMP}:{S_CMP+1}], -1, v{V_T}")
        A(f"v_add_u32 v{V_T+1}, s{S_T0}, v{V_RA}")
        A(f"s_or_b32 s{S_T0}, s{S_CMP}, s{S_CMP+1}")
        A(f"v_mov_b32 v{V_T}, s{S_T0}")
        A(f"ds_write_b32 v{V_T+1}, v{V_T}")
        A("s_waitcnt lgkmcnt(0)")
        A("s_barrier")
        A(f"ds_read_b128 {vr(V_PO,4)}, v{V_RA}")
        if self.fastsw: E(lsum)
        E(self.factors())
        A("s_waitcnt lgkmcnt(0)")
        A(f"v_or_b32 v{V_T}, v{V_PO}, v{V_PO+1}")
        A(f"v_or3_b32 v{V_T}, v{V_PO+2}, v{V_PO+3}, v{V_T}")
        A("s_nop 0")
        A(f"v_readfirstlane_b32 s{S_T0}, v{V_T}")
        A("s_nop 0")
        A(f"s_cmp_eq_u32 s{S_T0}, 0")
        A(f"s_cselect_b32 s{S_ROLE}, {R_CON}, {R_SOLO}")
        A("s_branch L_ckA_ret")
        self.label("L_ckA28b")
        if self.fastsw: E(lsum)
        E(self.factors())
        A("s_branch L_ckA_ret")
        self.label("L_ckA0")
        A(f"s_cmp_eq_u32 s{S_HALF}, {self.treehalf}")
        A("s_cbranch_scc0 L_ckA_ret")
        A(f"v_add_u32 v{V_T}, {LDS_TV}, v{V_VA}")
        A(f"ds_read_b128 {vr(V_PF,4)}, v{V_PA} offset:{LDS_TP - LDS_PX}")
        A(f"ds_read_b64_tr_b16 {vr(V_F,2)}, v{V_T}")
        A(f"ds_read_b64_tr_b16 {vr(V_F+2,2)}, v{V_T} offset:2048")
        A("s_waitcnt lgkmcnt(0)")
        A(f"v_mfma_f32_32x32x16_bf16 {vr(V_O,16)}, {vr(V_F,4)}, {vr(V_PF,4)}, {vr(V_O,16)}")
        A("s_nop 3")
        A("s_branch L_ckA_ret")
        self.label("L_treep")
        E(self.pscale(V_TREF, range(V_TP, V_TP + 4)))
        A(f"ds_write_b128 v{V_PA}, {vr(V_TP,4)} offset:{LDS_TP - LDS_PX}")
        A("s_branch L_treep_ret")
        for blk in self.ool: E(blk)
        self.ool = []
        self.label("L_tree")
        fl = first_loads(extra0 + 10)
        self.weave(su[npre:] + zero_o, fl[:nb-1])
        E(fl[nb-1])
        A("s_barrier")
        self.weave(qreads + self.tree_compute(), fl[nb:])
        A("s_branch L_main")
        self.label("L_solo")
        A(f"s_cmp_eq_u32 s{S_ROLE}, {R_IDLE}")
        A("s_cbranch_scc1 L_done")
        A(f"s_cmp_eq_u32 s{S_PASS}, 1")
        A("s_cbranch_scc1 L_combine")
        A(f"s_mov_b32 s{S_PASS}, 1")
        A("s_waitcnt lgkmcnt(0)")
        A("s_barrier")
        A(f"s_mov_b32 s{S_BOOST}, 0")
        A(f"s_xor_b32 s{S_HALF}, s{S_HALF}, 1")
        A(f"v_mov_b32 v{V_PML}, {hex(f2u(-1e30))}")
        A(f"v_mov_b32 v{V_PML+1}, 0")
        for r_ in range(8): A(f"v_mov_b32 v{V_PO+r_}, 0")
        A(f"s_lshl_b32 s{S_T0}, s{S_PAIR}, 21")
        E(self.srd_ins(SRD_S, P_K, None, S_T0))
        E(self.half_params())
        for g in range(4): A(f"v_xor_b32 v{V_SVO+g}, {g*64}, v{V_KVO0}")
        if self.treehalf == 0:
            self.is_tree()
            A("s_cbranch_scc0 L_solo2")
            self.tree_loads()
            A("s_waitcnt vmcnt(0)")
            E(self.tree_compute())
            self.label("L_solo2")
        for k in range(16): E(self.first_dma(k, None))
        A("s_branch L_main")
        self.label("L_code_end")
        self.L += ['.section .rodata,"a"', ".p2align 6", f".amdhsa_kernel {self.name}_kernel",
                   f"  .amdhsa_next_free_vgpr {NARCH + 256}", f"  .amdhsa_next_free_sgpr {NSGPR}", f"  .amdhsa_accum_offset {NARCH}",
                   "  .amdhsa_group_segment_fixed_size 0", "  .amdhsa_kernarg_size 72", "  .amdhsa_user_sgpr_count 2",
                   "  .amdhsa_user_sgpr_kernarg_segment_ptr 1", "  .amdhsa_system_sgpr_workgroup_id_x 1", ".end_amdhsa_kernel"]
        return "\n".join(self.L) + "\n"

def gen(name=NAME, **kw):
    return Gen(name=name, **kw).build()

from gen5 import read_stamps
import gen5
def report_stamps(sts):
    import numpy as np
    gen5.report_stamps(sts)
    m = np.median(np.array([[np.median(((a[:, j] - a[:, 0]) / 100.0).reshape(128, 8)[:, k]) for j in (5, 1) for k in range(8)] for a in sts]), 0)
    print("    by (half,wave): st5", np.round(m[:8], 2), "main", np.round(m[8:], 2))
    r = np.array([((a[:, 6] & 0xff).reshape(128, 8)[:, 0] == R_CON).mean() for a in sts])
    import os
    if os.environ.get('PERLAUNCH'):
        for a in sts:
            t0 = a[:, 0].min(); e = (a[:, 2] - t0) / 100.0; x = (a[:, 6] >> 8) & 15
            xm = np.array([e[x == j].mean() for j in range(8)])
            k = (a[:, 3] - t0) / 100.0; km = np.array([k[x == j].mean() for j in range(8)])
            s0 = (a[:, 0] - t0) / 100.0; sm = np.array([s0[x == j].mean() for j in range(8)])
            print("      end %.2f mean %.2f xcd" % ((a[:, 5].max() - t0) / 100.0, e.mean()), np.round(xm - e.mean(), 1), "kend %.2f" % k.mean(), np.round(km - k.mean(), 1), "start", np.round(sm, 1))

if __name__ == '__main__':
    import json
    kw = json.loads(sys.argv[1]) if len(sys.argv) > 1 else {}
    s = gen(**kw)
    if len(sys.argv) > 2: open(sys.argv[2], 'w').write(s)
    else: print(s)
```
